```python
import torch

def _softmax(x, axis=-1):
    return torch.softmax(x, dim=axis)
def _gelu(x):
    return torch.nn.functional.gelu(x, approximate="tanh")
def _silu(x):
    return torch.nn.functional.silu(x)
def _sigmoid(x):
    return torch.sigmoid(x)
def _layernorm(x, axis=-1, eps=1e-5):
    m = x.mean(dim=axis, keepdim=True)
    v = x.var(dim=axis, keepdim=True, unbiased=False)
    return (x - m) / torch.sqrt(v + eps)
def _scatter_add(tgt, idx, src, axis=0):
    return tgt.clone().index_add_(axis, idx, src)
def _segment_sum(src, seg, n):
    out = torch.zeros((n,) + src.shape[1:], dtype=src.dtype)
    return out.index_add_(0, seg, src)
def _pad(x, pw):
    flat = tuple(v for pair in reversed(pw) for v in pair)
    return torch.nn.functional.pad(x, flat)

kernel_name = 'recurrent_scan__spectral_gfnet__mixer_channel_mlp__prompt'

def setup_inputs():

    _w = (lambda a: (lambda t: t.to(torch.bfloat16) if t.is_floating_point() else t)(torch.as_tensor(a)))
    def _A_setup():
        B, S, D = 1, 2048, 576
        Df = D // 2 + 1
        return {
            "x": _w((lambda *s: torch.randn(*s, dtype=torch.bfloat16) * 0.05)(B, S, D)),
            "w_r": _w((lambda *s: torch.randn(*s, dtype=torch.bfloat16) * 0.8)(S, Df) * 0.02),
            "w_i": _w((lambda *s: torch.randn(*s, dtype=torch.bfloat16) * 0.8)(S, Df) * 0.02),
        }
    _A_in = _A_setup()

    def _B_setup():
        B, S, D, F = 1, 2048, 576, 4608
        return {
            "x": _w((lambda *s: torch.randn(*s, dtype=torch.bfloat16) * 0.05)(B, S, D)),
            "w1": _w((lambda *s: torch.randn(*s, dtype=torch.bfloat16) * 0.8)(D, F) * (D ** -0.5)),
            "b1": _w((lambda *s: torch.randn(*s, dtype=torch.bfloat16) * 0.8)(F)),
            "w2": _w((lambda *s: torch.randn(*s, dtype=torch.bfloat16) * 0.8)(F, D) * (F ** -0.5)),
            "b2": _w((lambda *s: torch.randn(*s, dtype=torch.bfloat16) * 0.2)(D)),
        }
    _B_in = _B_setup()

    return {
        "A_x": _A_in["x"],
        "A_w_r": _A_in["w_r"],
        "A_w_i": _A_in["w_i"],
        "B_x": _B_in["x"],
        "B_w1": _B_in["w1"],
        "B_b1": _B_in["b1"],
        "B_w2": _B_in["w2"],
        "B_b2": _B_in["b2"],
    }

def reference(A_x, A_w_r, A_w_i, B_x, B_w1, B_b1, B_w2, B_b2):
    def _A_ref(x, w_r, w_i):
        B, S, D = x.shape
        X = (lambda x, axes=(-2,-1): torch.fft.rfft2(x.float(), dim=axes))(x, axes=(-2, -1))
        W = w_r + 1j * w_i
        X = X * W
        y = (lambda x, s, axes=(-2,-1): torch.fft.irfft2(x, s=s, dim=axes).to(torch.bfloat16))(X, (S, D), axes=(-2, -1))
        return y

    def _B_ref(x, w1, b1, w2, b2):
        y = _layernorm(x, axis=-1)
        h = _gelu(torch.einsum("bsd,df->bsf", y, w1) + b1)
        return torch.einsum("bsf,fd->bsd", h, w2) + b2

    x = A_x
    xn = _layernorm(x, axis=-1)
    s = _A_ref(xn, A_w_r, A_w_i)
    g = _silu(_B_ref(xn, B_w1, B_b1, B_w2, B_b2))
    return x + s * g
```

```python
class Asm:
    def __init__(self):
        self.lines = []
        self._uid = 0
    def __call__(self, s):
        for l in s.strip("\n").split("\n"):
            self.lines.append(l)
    def label(self, name):
        self.lines.append(f"{name}:")
    def uid(self, p="L"):
        self._uid += 1
        return f"{p}_{self._uid}"
    def text(self):
        return "\n".join(self.lines) + "\n"

def vr(b, n=1):
    return f"v{b}" if n == 1 else f"v[{b}:{b+n-1}]"
def ar(b, n=1):
    return f"a{b}" if n == 1 else f"a[{b}:{b+n-1}]"
def sr(b, n=1):
    return f"s{b}" if n == 1 else f"s[{b}:{b+n-1}]"

def kernel_header(a, name):
    a(f".globl {name}\n.p2align 8\n.type {name},@function\n{name}:")

def kernel_desc(name, vgpr, sgpr, accum=None, agpr=0):
    acc_off = (vgpr + 3) // 4 * 4
    if accum is not None:
        acc_off = accum
    nfv = acc_off + agpr if agpr else vgpr
    return f""".amdhsa_kernel {name}
  .amdhsa_next_free_vgpr {nfv}
  .amdhsa_next_free_sgpr {sgpr}
  .amdhsa_accum_offset {acc_off}
  .amdhsa_group_segment_fixed_size 0
  .amdhsa_kernarg_size 88
  .amdhsa_user_sgpr_count 2
  .amdhsa_user_sgpr_kernarg_segment_ptr 1
  .amdhsa_system_sgpr_workgroup_id_x 1
.end_amdhsa_kernel
"""

def srd(a, d, lo, nbytes):
    a(f"s_mov_b32 s{d}, s{lo}\ns_and_b32 s{d+1}, s{lo+1}, 0xffff\ns_mov_b32 s{d+2}, {nbytes}\ns_mov_b32 s{d+3}, 0x00020000")
```

```python
from asmlib import *
from roles1 import *
import numpy as np

def bf16_rne(x):
    x = np.asarray(x, dtype=np.float32)
    u = x.view(np.uint32).astype(np.uint64)
    r = ((u + 0x7FFF + ((u >> 16) & 1)) >> 16).astype(np.uint16)
    return r
def bf16_f(u):
    return (np.asarray(u, dtype=np.uint32) << 16).view(np.float32)
def split_hl(x64):
    x64 = np.asarray(x64, dtype=np.float64)
    hi = bf16_rne(x64.astype(np.float32))
    lo = bf16_rne((x64 - bf16_f(hi).astype(np.float64)).astype(np.float32))
    return hi, lo

def slot_info(slot):
    par, rem = divmod(slot, 288); cg, jj = divmod(rem, 8)
    w, im = divmod(jj, 2)
    k = 2 * (4 * cg + w) + par
    if im and k == 0: return 288, 0
    return k, im

def emit_big_tables(a):
    c = np.cos(2 * np.pi * np.arange(576) / 576)
    c[np.abs(c) < 1e-15] = 0.0
    hi, lo = split_hl(c)
    for i in range(576):
        a(f".set c0_{i}, {hi[i]}\n.set c1_{i}, {lo[i]}")
    for s in range(576):
        k, im = slot_info(s)
        a(f".set sk_{s}, {k}\n.set so_{s}, {144*im}")
    a(""".altmacro
.macro EH idx
.short c0_\\idx
.endm
.macro EL idx
.short c1_\\idx
.endm
.macro GETK slot
.set curk, sk_\\slot
.set curo, so_\\slot
.endm
.macro TFFRAG e
 .set g_, 0
 .rept 4
  .set j_, 0
  .rept 16
   GETK %(16*st_+j_)
   .set n_, 32*s_+8*g_
   .rept 8
    \\e %((n_*curk+curo)%576)
    .set n_, n_+1
   .endr
   .set j_, j_+1
  .endr
  .set g_, g_+1
 .endr
.endm
.macro TIFRAG e
 .set g_, 0
 .rept 4
  .set i_, 0
  .rept 16
   .set sl_, par_*288+(4*s_+g_)*8
   .rept 8
    GETK %(sl_)
    \\e %(((16*nt_+i_)*curk+curo)%576)
    .set sl_, sl_+1
   .endr
   .set i_, i_+1
  .endr
  .set g_, g_+1
 .endr
.endm
.p2align 8
tab_tf:
.set st_, 0
.rept 36
 .set s_, 0
 .rept 9
  TFFRAG EH
  TFFRAG EL
  .set s_, s_+1
 .endr
 .set st_, st_+1
.endr
.p2align 8
tab_ti:
.set nt_, 0
.rept 18
 .set par_, 0
 .rept 2
  .set s_, 0
  .rept 9
   TIFRAG EH
   TIFRAG EL
   .set s_, s_+1
  .endr
  .set par_, par_+1
 .endr
 .set nt_, nt_+1
.endr
.noaltmacro
""")

def dord(q, h, t): return 16 * q + 8 * (t // 4) + 4 * h + t % 4
def dreg(v, h): return 8 * (v // 4) + 4 * h + v % 4

def cf_tables():
    out = []
    def mat(theta_fn):
        C = np.zeros((2, 64, 8)); Sn = np.zeros((2, 64, 8))
        for q in range(2):
            for l in range(64):
                for t in range(8):
                    th = theta_fn(dord(q, l // 32, t), l % 32)
                    C[q, l, t] = np.cos(th); Sn[q, l, t] = np.sin(th)
        C[np.abs(C) < 1e-15] = 0; Sn[np.abs(Sn) < 1e-15] = 0
        parts = []
        for M in (C, Sn, -Sn):
            hi, lo = split_hl(M)
            parts += [hi, lo]
        return np.stack(parts).astype(np.uint16).tobytes()
    out.append(mat(lambda k, o: 2 * np.pi * k * o / 32))
    out.append(mat(lambda a_, c_: 2 * np.pi * a_ * (2 * c_ + 1) / 64))
    out.append(mat(lambda c_, a_: 2 * np.pi * a_ * (2 * c_ + 1) / 64))
    def tw(fn, scale):
        T = np.zeros((32, 64))
        for v in range(16):
            for l in range(64):
                th = fn(dreg(v, l // 32), l % 32)
                T[v, l] = np.cos(th) * scale; T[16 + v, l] = np.sin(th) * scale
        return np.ascontiguousarray(T.reshape(8, 4, 64).transpose(0, 2, 1)).astype(np.float32).tobytes()
    for pi in range(2): out.append(tw(lambda b_, c_: 2 * np.pi * b_ * (2 * c_ + pi) / 2048, 1.0))
    for pi in range(2): out.append(tw(lambda c_, b_: 2 * np.pi * b_ * (2 * c_ + pi) / 2048, 2.0 / (S * D)))
    return b"".join(out)

def emit_bytes(a, label, data):
    a(f".p2align 8\n{label}:")
    u = np.frombuffer(data, dtype=np.uint32)
    for i in range(0, len(u), 8):
        a(".long " + ",".join("0x%x" % x for x in u[i:i+8]))

def table_srd(a, d, label, nbytes, tmp):
    a(f"""s_getpc_b64 s[{tmp}:{tmp+1}]
s_add_u32 s{tmp}, s{tmp}, {label}@rel32@lo+4
s_addc_u32 s{tmp+1}, s{tmp+1}, {label}@rel32@hi+12""")
    srd(a, d, tmp, nbytes)

def split_pairs(a, src, n, hi, lo, t):
    for j in range(n // 2):
        x0, x1 = src + 2*j, src + 2*j + 1
        t0 = t + 2 * (j % 2)
        a(f"""v_cvt_pk_bf16_f32 v{hi+j}, v{x0}, v{x1}
v_lshlrev_b32 v{t0}, 16, v{hi+j}
v_and_b32 v{t0+1}, 0xffff0000, v{hi+j}
v_sub_f32 v{t0}, v{x0}, v{t0}
v_sub_f32 v{t0+1}, v{x1}, v{t0+1}
v_cvt_pk_bf16_f32 v{lo+j}, v{t0}, v{t0+1}""")

def role_rd(a, swg):
    a(f"""
s_load_dwordx2 s[6:7], s[0:1], {KA_WS}
v_lshrrev_b32 v1, 6, v0
v_and_b32 v2, 63, v0                 ; lane
v_readfirstlane_b32 s24, v1          ; wave
s_and_b32 s25, s{swg}, 31            ; b
s_lshr_b32 s26, s{swg}, 5            ; sg
s_lshl_b32 s27, s26, 2
s_add_u32 s27, s27, s24              ; st
""")
    table_srd(a, 8, "tab_tf", 36*18*1024, 4)
    a("s_waitcnt lgkmcnt(0)")
    srd(a, 12, 6, WS_BYTES)
    a(f"""
v_lshlrev_b32 v3, 4, v2              ; lane*16
s_lshr_b32 s28, s24, 1
s_lshl_b32 s28, s28, 5
s_add_u32 s28, s28, s25
s_lshl_b32 s28, s28, 1
s_and_b32 s29, s24, 1
s_add_u32 s28, s28, s29              ; mtile
s_mul_i32 s28, s28, {18*1024}
s_add_u32 s28, s28, {WS_XN}
s_mul_i32 s29, s24, {18*1024}
s_mul_i32 s30, s27, {18*1024}
""")
    for i in range(18):
        a(f"s_add_u32 m0, s29, {i*1024}\ns_add_u32 s31, s28, {i*1024}\nbuffer_load_dwordx4 v3, s[12:15], s31 offen lds")
    TB = 64
    for i in range(18):
        if i % 4 == 0: a(f"s_add_u32 s31, s30, {i*1024}")
        a(f"buffer_load_dwordx4 v[{TB+4*i}:{TB+4*i+3}], v3, s[8:11], s31 offen offset:{(i%4)*1024}")
    a("s_waitcnt vmcnt(18)\ns_barrier")
    AC = 16
    XF = 140
    a(f"v_add_u32 v4, {36*1024}, v3")
    def xread(s9):
        for T in range(4):
            for eta in range(2):
                r = XF + (s9 % 2) * 32 + (T*2+eta) * 4
                off = (T * 18 + 9 * eta + s9) * 1024
                if off >= 36*1024: a(f"ds_read_b128 v[{r}:{r+3}], v4 offset:{off-36*1024}")
                else: a(f"ds_read_b128 v[{r}:{r+3}], v3 offset:{off}")
    xread(0)
    for s9 in range(9):
        if s9 + 1 < 9:
            xread(s9 + 1)
            a(f"s_waitcnt lgkmcnt(8) vmcnt({16 - 2*s9})")
        else:
            a("s_waitcnt lgkmcnt(0) vmcnt(0)")
        for hl in range(2):
            for te in range(8):
                r = XF + (s9 % 2) * 32 + te * 4
                tb = TB + (s9 * 2 + hl) * 4
                d = AC + te * 4
                c = "0" if (s9 == 0 and hl == 0) else f"v[{d}:{d+3}]"
                a(f"v_mfma_f32_16x16x32_bf16 v[{d}:{d+3}], v[{r}:{r+3}], v[{tb}:{tb+3}], {c}")
    a("s_nop 7\ns_nop 3")
    a(f"s_cmp_lt_u32 s27, 18\ns_cselect_b32 s32, 1.0, -1.0")
    for T in range(4):
        for v in range(4):
            a(f"v_fma_f32 v{AC+T*8+v}, v{AC+T*8+4+v}, s32, v{AC+T*8+v}")
    for tau in range(2):
        for v in range(4):
            a(f"v_add_f32 v{48+tau*4+v}, v{AC+tau*8+v}, v{AC+(2+tau)*8+v}")
            a(f"v_sub_f32 v{56+tau*4+v}, v{AC+tau*8+v}, v{AC+(2+tau)*8+v}")
    split_pairs(a, 48, 8, 64, 68, 80)
    split_pairs(a, 56, 8, 72, 76, 80)
    a(f"""
v_and_b32 v5, 15, v2
v_lshlrev_b32 v5, 13, v5
v_lshrrev_b32 v6, 4, v2
v_lshl_add_u32 v5, v6, 9, v5
s_lshl_b32 s33, s27, 17
s_lshl_b32 s34, s25, 4
s_add_u32 s33, s33, s34
s_add_u32 s33, s33, {WS_Z}
s_add_u32 s34, s33, 4096
buffer_store_dwordx4 v[64:67], v5, s[12:15], s33 offen
buffer_store_dwordx4 v[68:71], v5, s[12:15], s33 offen offset:2048
buffer_store_dwordx4 v[72:75], v5, s[12:15], s34 offen
buffer_store_dwordx4 v[76:79], v5, s[12:15], s34 offen offset:2048
s_endpgm
""")

CF_D  = 16
CF_O  = 48
CF_TA = 80
CF_TB = 128
CF_TW = 176
CF_W  = 208
CF_SV = 224
CF_T  = 240
CF_LDS_STRIDE = 528
CF_LDS_HALF = 32 * CF_LDS_STRIDE
def cf_stage(a, tab, data_as_a, inverse):
    Rh, Rl, Ih, Il = CF_D, CF_D+8, CF_D+16, CF_D+24
    Ch, Cl, Sh, Sl, Nh, Nl = [tab + 8*i for i in range(6)]
    if inverse: (Ph, Pl), (Qh, Ql) = (Nh, Nl), (Sh, Sl)
    else: (Ph, Pl), (Qh, Ql) = (Sh, Sl), (Nh, Nl)
    terms_r = [(Rh, Ch), (Rl, Ch), (Rh, Cl), (Ih, Ph), (Il, Ph), (Ih, Pl)]
    terms_i = [(Ih, Ch), (Il, Ch), (Ih, Cl), (Rh, Qh), (Rl, Qh), (Rh, Ql)]
    first = [True, True]
    for j in range(6):
        for q in range(2):
            for o, terms in enumerate((terms_r, terms_i)):
                dd, tt = terms[j]
                d = CF_O + 16 * o
                x = f"v[{dd+4*q}:{dd+4*q+3}]"; y = f"v[{tt+4*q}:{tt+4*q+3}]"
                if not data_as_a: x, y = y, x
                c = "0" if first[o] else f"v[{d}:{d+15}]"
                first[o] = False
                a(f"v_mfma_f32_32x32x16_bf16 v[{d}:{d+15}], {x}, {y}, {c}")
    a("s_nop 15\ns_nop 3")
def cf_twiddle(a, inverse):
    for v in range(16):
        xr, xi, c, s = CF_O+v, CF_O+16+v, CF_TW+v, CF_TW+16+v
        t = CF_T + 2 * (v % 2)
        if not inverse:
            a(f"v_mul_f32 v{t}, v{xr}, v{c}\nv_mul_f32 v{t+1}, v{xi}, v{c}\nv_fma_f32 v{t+1}, -v{xr}, v{s}, v{t+1}\nv_fma_f32 v{xr}, v{xi}, v{s}, v{t}\nv_mov_b32 v{xi}, v{t+1}")
        else:
            a(f"v_mul_f32 v{t}, v{xr}, v{c}\nv_mul_f32 v{t+1}, v{xi}, v{c}\nv_fma_f32 v{t+1}, v{xr}, v{s}, v{t+1}\nv_fma_f32 v{xr}, -v{xi}, v{s}, v{t}\nv_mov_b32 v{xi}, v{t+1}")
def cf_split(a):
    split_pairs(a, CF_O, 16, CF_D, CF_D+8, CF_T)
    split_pairs(a, CF_O+16, 16, CF_D+16, CF_D+24, CF_T)
    a("s_nop 1")

def role_cf(a, swg):
    a(f"""
s_load_dwordx2 s[6:7], s[0:1], {KA_WS}
v_lshrrev_b32 v1, 6, v0
v_and_b32 v2, 63, v0
v_readfirstlane_b32 s24, v1          ; wave w
s_and_b32 s25, s{swg}, 1             ; pi
s_lshr_b32 s26, s{swg}, 1
s_and_b32 s26, s26, 1                ; par
s_lshr_b32 s27, s{swg}, 2            ; cg
""")
    table_srd(a, 8, "tab_cf", 69632, 4)
    a("s_waitcnt lgkmcnt(0)")
    srd(a, 12, 6, WS_BYTES)
    a(f"""
v_lshlrev_b32 v3, 4, v2              ; lane*16
v_lshlrev_b32 v4, 2, v2              ; lane*4
s_lshl_b32 s28, s27, 2
s_add_u32 s28, s28, s24              ; 4cg+w
s_lshl_b32 s29, s28, 1
s_add_u32 s29, s29, s26              ; k
s_mul_i32 s30, s26, 288
s_lshl_b32 s31, s28, 1
s_add_u32 s30, s30, s31
s_lshl_b32 s30, s30, 13
s_lshl_b32 s31, s25, 12
s_add_u32 s30, s30, s31
s_add_u32 s30, s30, {WS_Z}
s_add_u32 s31, s30, 8192
s_mov_b32 s32, 1.0
s_mov_b32 s33, 0
s_cmp_lg_u32 s29, 0
s_cbranch_scc1 CF_notspecial
s_mov_b32 s33, 1
s_mov_b32 s32, 0.5
s_mov_b32 s31, 0x7ff00000
CF_notspecial:
s_mul_i32 s34, s25, 12288
s_mul_i32 s35, s25, 24576
s_lshl_b32 s36, s25, 13
s_add_u32 s37, s36, 53248            ; TW2
s_add_u32 s36, s36, 36864            ; TW1
""")
    def load_tab(reg, soff):
        for i in range(12):
            if i % 4 == 0: a(f"s_add_u32 s40, {soff}, {i*1024}")
            a(f"buffer_load_dwordx4 v[{reg+4*i}:{reg+4*i+3}], v3, s[8:11], s40 offen offset:{(i%4)*1024}")
    def load_tw(soff):
        for i in range(8):
            if i % 4 == 0: a(f"s_add_u32 s40, {soff}, {i*1024}")
            a(f"buffer_load_dwordx4 v[{CF_TW+4*i}:{CF_TW+4*i+3}], v3, s[8:11], s40 offen offset:{(i%4)*1024}")
    load_tab(CF_TA, "0")
    a.label("CF_pass")
    for part, so in ((0, 30), (1, 31)):
        for hl in range(2):
            for q in range(2):
                r = CF_D + part*16 + hl*8 + q*4
                a(f"buffer_load_dwordx4 v[{r}:{r+3}], v3, s[12:15], s{so} offen offset:{hl*2048+q*1024}")
    load_tab(CF_TB, "s34")
    load_tw("s36")
    a(f"s_lshl_b32 s38, s29, 13\ns_lshl_b32 s39, s25, 12\ns_add_u32 s38, s38, s39\ns_add_u32 s38, s38, {WS_WT}")
    for v in range(16):
        a(f"buffer_load_dword v{CF_W+v}, v4, s[12:15], s38 offen offset:{v*256}")
    a("s_waitcnt vmcnt(24)")
    cf_stage(a, CF_TB, True, False)
    load_tab(CF_TB, "s35")
    a("s_waitcnt vmcnt(28)")
    cf_twiddle(a, False)
    load_tw("s37")
    cf_split(a)
    cf_stage(a, CF_TA, False, False)
    a("s_waitcnt vmcnt(20)")
    for v in range(16):
        xr, xi, w = CF_O+v, CF_O+16+v, CF_W+v
        t = CF_T + 4 * (v % 2)
        a(f"""v_lshlrev_b32 v{t}, 16, v{w}
v_and_b32 v{t+1}, 0xffff0000, v{w}
v_mul_f32 v{t}, s32, v{t}
v_mul_f32 v{t+1}, s32, v{t+1}
v_mul_f32 v{t+2}, v{xr}, v{t}
v_mul_f32 v{t+3}, v{xr}, v{t+1}
v_fma_f32 v{xr}, -v{xi}, v{t+1}, v{t+2}
v_fma_f32 v{xi}, v{xi}, v{t}, v{t+3}""")
    cf_split(a)
    cf_stage(a, CF_TA, True, True)
    a("s_waitcnt vmcnt(0)")
    cf_twiddle(a, True)
    cf_split(a)
    cf_stage(a, CF_TB, False, True)
    a("s_cmp_eq_u32 s33, 0\ns_cbranch_scc1 CF_out\ns_cmp_eq_u32 s33, 2\ns_cbranch_scc1 CF_sp2")
    for v in range(16): a(f"v_mov_b32 v{CF_SV+v}, v{CF_O+v}")
    a("s_mov_b32 s33, 2\ns_add_u32 s30, s30, 8192\ns_mov_b32 s29, 288\ns_branch CF_pass")
    a.label("CF_sp2")
    for v in range(16): a(f"v_mov_b32 v{CF_O+16+v}, v{CF_O+v}\nv_mov_b32 v{CF_O+v}, v{CF_SV+v}")
    a.label("CF_out")
    a(f"""
v_and_b32 v5, 31, v2
v_mul_u32_u24 v5, {CF_LDS_STRIDE}, v5
v_lshrrev_b32 v6, 5, v2
v_lshl_add_u32 v5, v6, 6, v5         ; + h*4*16
s_lshl_b32 s38, s24, 2
v_add_u32 v5, s38, v5
""")
    for v in range(16):
        xr, xi = CF_O+v, CF_O+16+v
        t = CF_T + 4 * (v % 2)
        off = (((v // 4) % 2) * 16 + 8 * (v // 8) + v % 4) * 16
        a(f"""v_cvt_pk_bf16_f32 v{t}, v{xr}, v{xi}
v_lshlrev_b32 v{t+1}, 16, v{t}
v_and_b32 v{t+2}, 0xffff0000, v{t}
v_sub_f32 v{t+1}, v{xr}, v{t+1}
v_sub_f32 v{t+2}, v{xi}, v{t+2}
v_cvt_pk_bf16_f32 v{t+1}, v{t+1}, v{t+2}
ds_write_b32 v5, v{t} offset:{off}
ds_write_b32 v5, v{t+1} offset:{off+CF_LDS_HALF}""")
    a("s_waitcnt lgkmcnt(0)\ns_barrier")
    a(f"""
v_lshrrev_b32 v6, 5, v2              ; lane/32
v_and_b32 v7, 31, v2                 ; chunk
v_mul_u32_u24 v8, {CF_LDS_STRIDE}, v6
v_lshl_add_u32 v8, v7, 4, v8
s_mul_i32 s38, s24, {8*CF_LDS_STRIDE}
v_add_u32 v8, s38, v8
v_lshrrev_b32 v9, 4, v2
v_mul_u32_u24 v9, {9*2048}, v9
v_and_b32 v10, 15, v2
v_lshl_add_u32 v9, v10, 4, v9
s_lshl_b32 s38, s25, 1
s_add_u32 s38, s38, s26
s_lshl_b32 s38, s38, 6
s_lshl_b32 s39, s24, 4
s_add_u32 s38, s38, s39
s_mul_i32 s38, s38, {9*2048}
s_lshr_b32 s39, s27, 2
s_lshl_b32 s39, s39, 11
s_add_u32 s38, s38, s39
s_and_b32 s39, s27, 3
s_lshl_b32 s39, s39, 8
s_add_u32 s38, s38, s39
s_add_u32 s38, s38, {WS_V}
""")
    for j in range(4):
        for hl in range(2):
            r = 16 + (j*2+hl)*4
            a(f"ds_read_b128 v[{r}:{r+3}], v8 offset:{j*2*CF_LDS_STRIDE + hl*CF_LDS_HALF}")
    for j in range(4):
        for hl in range(2):
            r = 16 + (j*2+hl)*4
            a(f"s_waitcnt lgkmcnt({7-(j*2+hl)})")
            a(f"buffer_store_dwordx4 v[{r}:{r+3}], v9, s[12:15], s38 offen offset:{hl*1024}")
        if j < 3: a(f"s_add_u32 s38, s38, {4*9*2048}")
    a("s_endpgm")

def role_ri(a, swg, nks=8):
    a(f"""
s_load_dwordx2 s[6:7], s[0:1], {KA_WS}
s_load_dwordx2 s[16:17], s[0:1], {KA_X}
s_load_dwordx2 s[18:19], s[0:1], {KA_OUT}
s_load_dwordx2 s[44:45], s[0:1], {KA_B2}
v_lshrrev_b32 v1, 6, v0
v_and_b32 v2, 63, v0
v_readfirstlane_b32 s24, v1          ; wave
s_and_b32 s25, s{swg}, 63            ; rt
s_lshr_b32 s26, s{swg}, 6            ; ng
s_mul_i32 s27, s26, 6
s_add_u32 s27, s27, s24              ; nt
""")
    table_srd(a, 8, "tab_ti", 18*36*1024, 4)
    a("s_waitcnt lgkmcnt(0)")
    srd(a, 12, 6, WS_BYTES)
    srd(a, 20, 16, S*D*2)
    srd(a, 48, 18, S*D*2)
    srd(a, 52, 44, D*2)
    a(f"""
v_lshlrev_b32 v3, 4, v2
s_mul_i32 s28, s25, {18*1024}
s_add_u32 s28, s28, {WS_V}
s_mul_i32 s30, s27, {36*1024}
""")
    a("s_mul_i32 s29, s24, 12")
    for i in range(12):
        a(f"""s_add_u32 s31, s29, {i}
s_mul_i32 s32, s31, 3641
s_lshr_b32 s32, s32, 16              ; blk
s_mul_i32 s33, s32, {64*18*1024 - 18*1024}
s_lshl_b32 s34, s31, 10
s_mov_b32 m0, s34
s_add_u32 s33, s33, s34
s_add_u32 s33, s33, s28
buffer_load_dwordx4 v3, s[12:15], s33 offen lds""")
    TB = 64
    for i in range(36):
        if i % 4 == 0: a(f"s_add_u32 s31, s30, {i*1024}")
        a(f"buffer_load_dwordx4 v[{TB+4*i}:{TB+4*i+3}], v3, s[8:11], s31 offen offset:{(i%4)*1024}")
    a("s_waitcnt vmcnt(36)\ns_barrier")
    AC = 16
    BF = 208
    a(f"v_add_u32 v4, {36*1024}, v3")
    steps = [(par, s) for par in range(2) for s in range(9)]
    def vread(idx):
        par, s = steps[idx]
        for pi in range(2):
            for hl in range(2):
                r = BF + (idx % 2) * 16 + (pi*2+hl) * 4
                off = ((pi*2+par) * 18 + s*2 + hl) * 1024
                if off >= 36*1024: a(f"ds_read_b128 v[{r}:{r+3}], v4 offset:{off-36*1024}")
                else: a(f"ds_read_b128 v[{r}:{r+3}], v3 offset:{off}")
    vread(0)
    for idx, (par, s) in enumerate(steps):
        if idx + 1 < 18:
            vread(idx + 1)
            a(f"s_waitcnt lgkmcnt(4) vmcnt({34 - 2*idx})")
        else:
            a("s_waitcnt lgkmcnt(0) vmcnt(0)")
        th = TB + idx * 8; tl = th + 4
        for (tt, bh) in ((th, 0), (th, 1), (tl, 0)):
            for pi in range(2):
                r = BF + (idx % 2) * 16 + (pi*2+bh) * 4
                d = AC + (pi*2+par) * 4
                c = "0" if (s == 0 and tt == th and bh == 0) else f"v[{d}:{d+3}]"
                a(f"v_mfma_f32_16x16x32_bf16 v[{d}:{d+3}], v[{tt}:{tt+3}], v[{r}:{r+3}], {c}")
    PB = 64
    a(f"""
v_lshlrev_b32 v5, 3, v2              ; lane*8
s_mul_i32 s31, s25, 36
s_add_u32 s31, s31, s27
s_lshl_b32 s31, s31, 9
s_add_u32 s31, s31, {WS_P}
""")
    for o in range(4):
        rho, eta = divmod(o, 2)
        for ks in range(nks):
            r = PB + (o * nks + ks) * 2
            a(f"s_add_u32 s32, s31, {((ks*128 + rho*64)*36 + 18*eta)*512}")
            a(f"buffer_load_dwordx2 v[{r}:{r+1}], v5, s[12:15], s32 offen")
    XB = PB + 4 * nks * 2
    a(f"""
v_and_b32 v6, 15, v2                 ; i
v_lshrrev_b32 v7, 3, v6
v_lshlrev_b32 v7, 4, v7
v_and_b32 v6, 7, v6
v_add_u32 v6, v6, v7                 ; 16(i/8)+i%8
s_and_b32 s32, s25, 1
s_lshl_b32 s32, s32, 3
v_add_u32 v6, s32, v6                ; a
v_mul_u32_u24 v6, {32*1152}, v6
v_lshrrev_b32 v7, 4, v2              ; g
v_lshlrev_b32 v7, 3, v7              ; g*8 bytes
v_add_u32 v6, v6, v7
s_lshr_b32 s32, s25, 1
s_mul_i32 s32, s32, 1152
s_lshl_b32 s33, s27, 5
s_add_u32 s32, s32, s33
s_add_u32 s34, s32, {1024*1152}
""")
    for o in range(4):
        rho, eta = divmod(o, 2)
        a(f"buffer_load_dwordx2 v[{XB+2*o}:{XB+2*o+1}], v6, s[20:23], s{34 if rho else 32} offen offset:{576*eta}")
    BB = XB + 8
    for eta in range(2):
        a(f"buffer_load_dwordx2 v[{BB+2*eta}:{BB+2*eta+1}], v7, s[52:55], s33 offen offset:{576*eta}")
    a("s_nop 3")
    for v in range(4):
        E0, O0, E1, O1 = AC+v, AC+4+v, AC+8+v, AC+12+v
        a(f"""v_add_f32 v48, v{E0}, v{O0}
v_sub_f32 v49, v{E0}, v{O0}
v_add_f32 v50, v{E1}, v{O1}
v_sub_f32 v51, v{E1}, v{O1}
v_add_f32 v{32+v}, v48, v50
v_add_f32 v{36+v}, v49, v51
v_sub_f32 v{40+v}, v48, v50
v_sub_f32 v{44+v}, v49, v51""")
    a(f"s_mov_b32 s35, {f32hex(-np.log2(np.e))}")
    a("s_waitcnt vmcnt(0)")
    T = 8
    for o in range(4):
        rho, eta = divmod(o, 2)
        for ks in range(nks):
            r = PB + (o * nks + ks) * 2
            if ks == 0:
                a(f"v_lshlrev_b32 v48, 16, v{r}\nv_and_b32 v49, 0xffff0000, v{r}\nv_lshlrev_b32 v50, 16, v{r+1}\nv_and_b32 v51, 0xffff0000, v{r+1}")
            else:
                a(f"v_lshlrev_b32 v52, 16, v{r}\nv_and_b32 v53, 0xffff0000, v{r}\nv_lshlrev_b32 v54, 16, v{r+1}\nv_and_b32 v55, 0xffff0000, v{r+1}")
                for v in range(4): a(f"v_add_f32 v{48+v}, v{48+v}, v{52+v}")
        def rnd4(b):
            a(f"v_cvt_pk_bf16_f32 v{T}, v{b}, v{b+1}\nv_cvt_pk_bf16_f32 v{T+1}, v{b+2}, v{b+3}")
            a(f"v_lshlrev_b32 v{b}, 16, v{T}\nv_and_b32 v{b+1}, 0xffff0000, v{T}\nv_lshlrev_b32 v{b+2}, 16, v{T+1}\nv_and_b32 v{b+3}, 0xffff0000, v{T+1}")
        def unp4(d, r):
            a(f"v_lshlrev_b32 v{d}, 16, v{r}\nv_and_b32 v{d+1}, 0xffff0000, v{r}\nv_lshlrev_b32 v{d+2}, 16, v{r+1}\nv_and_b32 v{d+3}, 0xffff0000, v{r+1}")
        rnd4(48)
        unp4(52, BB + 2*eta)
        for v in range(4): a(f"v_add_f32 v{48+v}, v{48+v}, v{52+v}")
        rnd4(48)
        for v in range(4): a(f"v_mul_f32 v{52+v}, s35, v{48+v}")
        for v in range(4): a(f"v_exp_f32 v{52+v}, v{52+v}")
        for v in range(4): a(f"v_add_f32 v{52+v}, 1.0, v{52+v}")
        for v in range(4): a(f"v_rcp_f32 v{52+v}, v{52+v}")
        for v in range(4): a(f"v_mul_f32 v{48+v}, v{48+v}, v{52+v}")
        rnd4(48)
        rnd4(32 + 4*o)
        for v in range(4): a(f"v_mul_f32 v{48+v}, v{48+v}, v{32+4*o+v}")
        rnd4(48)
        unp4(52, XB + 2*o)
        for v in range(4): a(f"v_add_f32 v{48+v}, v{48+v}, v{52+v}")
        a(f"v_cvt_pk_bf16_f32 v{56+2*o}, v48, v49\nv_cvt_pk_bf16_f32 v{57+2*o}, v50, v51")
        a(f"buffer_store_dwordx2 v[{56+2*o}:{57+2*o}], v6, s[48:51], s{34 if rho else 32} offen offset:{576*eta}")
    a("s_endpgm")
```

```python
from asmlib import *
from roles1 import *

class Cnt:
    def __init__(self, a, name, maxv):
        self.a, self.name, self.maxv = a, name, maxv
        self.issued = 0
        self.done = 0
    def issue(self):
        self.issued += 1
        return self.issued - 1
    def need(self, idx):
        if idx < self.done: return None
        n = self.issued - idx - 1
        self.done = idx + 1
        return min(n, self.maxv)
    def wait(self, idx):
        n = self.need(idx)
        if n is not None:
            self.a(f"s_waitcnt {self.name}({n})")
    def wait_all(self):
        if self.done < self.issued:
            self.a(f"s_waitcnt {self.name}(0)")
            self.done = self.issued

SLAB = 9216
STAMPS = False
WARM = False
VARIANT = 'A'
STAMP_S0 = 60
_stamp_n = [0]
def stamp(a):
    if not STAMPS: return
    i = _stamp_n[0]; _stamp_n[0] += 1
    a(f"s_memtime s[{STAMP_S0+2*i}:{STAMP_S0+2*i+1}]")
def stamp_flush(a, swg, swave, base, srdws=12):
    if not STAMPS: return
    n = _stamp_n[0]; _stamp_n[0] = 0
    a("s_waitcnt lgkmcnt(0) vmcnt(0)")
    a(f"s_memtime s[{STAMP_S0+2*n}:{STAMP_S0+2*n+1}]\ns_waitcnt lgkmcnt(0)")
    n += 1
    a(f"s_lshl_b32 s58, s{swg}, 2\ns_add_u32 s58, s58, s{swave}\ns_lshl_b32 s58, s58, 6\ns_add_u32 s58, s58, {base}")
    a("v_mov_b32 v1, 0")
    for i in range(n):
        a(f"v_mov_b32 v0, s{STAMP_S0+2*i}\nbuffer_store_dword v0, v1, s[{srdws}:{srdws+3}], s58 offen offset:{4*i}")

GELU_C0 = -2.0 * np.sqrt(2.0 / np.pi) * np.log2(np.e)
GELU_C1 = GELU_C0 * 0.044715

ACC = 0
ACT = 144
AFR = 208
VA  = 232
VD  = 236
VL  = 245
VT  = 247
PD, LA = 3, 5
RA = LA + 1

def acc(mt, nt): return ACC + (mt * 9 + nt) * 4

def gemm_core(a, cfg):
    NS = 18
    vm = Cnt(a, "vmcnt", 63); lg = Cnt(a, "lgkmcnt", 15)
    vm.issued = cfg.get("pre_vm", 0)
    st = cfg["stmp"]
    dma_last = {}
    def dma_list(stage):
        out = []
        for i in range(9):
            def f(i=i):
                if i == 0:
                    a(f"s_add_u32 s{st}, s{cfg['s_wslab']}, {stage * cfg['w_stage_stride']}")
                a(f"s_add_u32 m0, s{cfg['s_m0']}, {(stage % 2) * 4 * SLAB + i * 1024}")
                a("s_nop 0")
                a(f"buffer_load_dwordx4 v{VD+i}, s[{cfg['w_srd']}:{cfg['w_srd']+3}], s{st} offen lds")
                dma_last[stage] = vm.issue()
            out.append(f)
        return out
    act_last = {}
    def act_load(s):
        so, imm = cfg["act_step"](s)
        for mt in range(4):
            r = ACT + (s % (PD + 1)) * 16 + mt * 4
            a(f"buffer_load_dwordx4 v[{r}:{r+3}], v{VA+mt}, s[{cfg['act_srd']}:{cfg['act_srd']+3}], {so} offen offset:{imm}")
            act_last[s] = vm.issue()
    tr_last = {}
    def tr_read(t):
        s, nt = divmod(t, 9)
        stage, j = divmod(s, 4)
        r = AFR + (t % RA) * 4
        off = j * SLAB + nt * 32
        a(f"ds_read_b64_tr_b16 v[{r}:{r+1}], v{VL + stage % 2} offset:{off}")
        lg.issue()
        a(f"ds_read_b64_tr_b16 v[{r+2}:{r+3}], v{VL + stage % 2} offset:{off + cfg['tr2']}")
        tr_last[t] = lg.issue()
    if cfg.get("warm"):
        for stage in range(5):
            for f in dma_list(stage): f()
            a("s_waitcnt vmcnt(0)")
        for s_ in range(NS):
            act_load(s_)
            if s_ % 4 == 3: a("s_waitcnt vmcnt(0)")
        a("s_waitcnt vmcnt(0)\ns_barrier\ns_sleep 100\ns_sleep 100\ns_sleep 100\ns_sleep 100")
        vm.done = vm.issued
        _stamp_n[0] = 0
        stamp(a)
    for f in dma_list(0): f()
    act_load(0)
    for f in dma_list(1): f()
    for s in range(1, PD): act_load(s)
    if "prologue_extra" in cfg: cfg["prologue_extra"](vm)
    stamp(a)
    vm.wait(dma_last[0])
    a("s_barrier")
    stamp(a)
    NT = NS * 9
    next_read = 0
    avail_stage = 0
    pending_dma = []
    def pump_reads(upto):
        nonlocal next_read
        while next_read <= upto and next_read < NT and (next_read // 36) <= avail_stage:
            tr_read(next_read); next_read += 1
    pump_reads(LA - 1)
    for t in range(NT):
        s, nt = divmod(t, 9)
        if nt == 0:
            vm.wait(act_last[s])
            if s + PD < NS: act_load(s + PD)
        lg.wait(tr_last[t])
        ra = AFR + (t % RA) * 4
        for mt in range(4):
            rb = ACT + (s % (PD + 1)) * 16 + mt * 4
            d = acc(mt, nt)
            c = cfg["first_c"](mt, nt) if s == 0 else f"v[{d}:{d+3}]"
            a(f"v_mfma_f32_16x16x32_bf16 v[{d}:{d+3}], v[{ra}:{ra+3}], v[{rb}:{rb+3}], {c}")
            if mt == 1 and pending_dma:
                pending_dma.pop(0)()
        stage = t // 36
        if t == 36 * (stage + 1) - LA + 1 and 36 * (stage + 1) < NT:
            n = vm.need(dma_last[stage + 1])
            lg.done = lg.issued
            a(f"s_waitcnt lgkmcnt(0)" + (f" vmcnt({n})" if n is not None else ""))
            a("s_barrier")
            stamp(a)
            avail_stage = stage + 1
            if (stage + 2) * 4 < NS:
                pending_dma = dma_list(stage + 2)
        pump_reads(t + LA)
    a("s_nop 7\ns_nop 3")
    stamp(a)
    return vm

def prow_tables(kind):
    out = []
    for p in range(576):
        prow, o = divmod(p, 18)
        if kind == "nat":
            hi, r16 = divmod(prow, 16)
            inv = {0:0,1:1,2:2,3:3,4:8,5:9,6:10,7:11,8:4,9:5,10:6,11:7,12:12,13:13,14:14,15:15}[r16]
            row = hi * 16 + inv
        else:
            row = prow
        out.append((row, o))
    return out

def setup_dma_offsets(a, vlane, ldw, kind, t0, t1, t2):
    for i in range(9):
        a(f"v_add_u32 v{t0}, {64*i}, v{vlane}")
        a(f"v_mul_u32_u24 v{t1}, 3641, v{t0}\nv_lshrrev_b32 v{t1}, 16, v{t1}")
        a(f"v_mul_u32_u24 v{t2}, 18, v{t1}\nv_sub_u32 v{t0}, v{t0}, v{t2}")
        if kind == "nat":
            a(f"v_lshrrev_b32 v{t2}, 1, v{t1}\nv_xor_b32 v{t2}, v{t2}, v{t1}\nv_and_b32 v{t2}, 4, v{t2}")
            a(f"v_mul_u32_u24 v{t2}, 3, v{t2}\nv_xor_b32 v{t1}, v{t1}, v{t2}")
        a(f"v_mul_u32_u24 v{t1}, {ldw}, v{t1}")
        a(f"v_lshl_add_u32 v{VD+i}, v{t0}, 4, v{t1}")
for p in range(576): assert (p * 3641) >> 16 == p // 18

def setup_lds_read(a, vlane, kind, t0, t1):
    a(f"v_lshrrev_b32 v{t0}, 2, v{vlane}")
    if kind == "nat":
        a(f"v_and_b32 v{t1}, 8, v{t0}\nv_add_u32 v{t0}, v{t0}, v{t1}")
    a(f"v_mul_u32_u24 v{t0}, 288, v{t0}")
    a(f"v_and_b32 v{t1}, 3, v{vlane}\nv_lshl_add_u32 v{VL}, v{t1}, 3, v{t0}")
    a(f"v_add_u32 v{VL+1}, {4*SLAB}, v{VL}")

def gelu4(a, r, t, vc0, sc1):
    for j in range(4): a(f"v_mul_f32 v{t+j}, v{r+j}, v{r+j}")
    for j in range(4): a(f"v_fma_f32 v{t+j}, v{t+j}, s{sc1}, v{vc0}")
    for j in range(4): a(f"v_mul_f32 v{t+j}, v{t+j}, v{r+j}")
    for j in range(4): a(f"v_exp_f32 v{t+j}, v{t+j}")
    for j in range(4): a(f"v_add_f32 v{t+j}, 1.0, v{t+j}")
    for j in range(4): a(f"v_rcp_f32 v{t+j}, v{t+j}")
    for j in range(4): a(f"v_mul_f32 v{r+j}, v{r+j}, v{t+j}")

def role_g1(a, swg, act_base=WS_Y):
    stamp(a)
    a(f"""
s_load_dwordx2 s[4:5], s[0:1], {KA_W1}
s_load_dwordx2 s[6:7], s[0:1], {KA_WS}
s_load_dwordx2 s[16:17], s[0:1], {KA_B1}
v_mov_b32 v{VT+8}, v0
v_lshrrev_b32 v{VT}, 6, v0
v_and_b32 v{VT+7}, 63, v0            ; lane
v_readfirstlane_b32 s24, v{VT}       ; wave
s_and_b32 s25, s{swg}, 7             ; xcd
s_lshr_b32 s26, s{swg}, 3            ; j
s_and_b32 s27, s25, 1
s_lshl_b32 s27, s27, 2
s_and_b32 s28, s26, 3
s_add_u32 s27, s27, s28              ; Mt
s_lshr_b32 s28, s25, 1
s_lshl_b32 s28, s28, 3
s_lshr_b32 s29, s26, 2
s_add_u32 s28, s28, s29              ; Nt
s_waitcnt lgkmcnt(0)
""")
    srd(a, 8, 4, D*F*2)
    srd(a, 12, 6, WS_BYTES)
    srd(a, 20, 16, F*2)
    L = VT + 7
    setup_dma_offsets(a, L, 1152 if 'B' in VARIANT else 9216, "nat", VT, VT+1, VT+2)
    setup_lds_read(a, L, "nat", VT, VT+1)
    a(f"""
s_lshl_b32 s30, s27, 2
s_add_u32 s30, s30, s24
s_mul_i32 s31, s30, {64*1152}
s_add_u32 s31, s31, {act_base}
v_and_b32 v{VT}, 15, v{L}
v_mul_u32_u24 v{VT}, 1152, v{VT}
v_lshrrev_b32 v{VT+1}, 4, v{L}
v_lshl_add_u32 v{VT}, v{VT+1}, 4, v{VT}
v_add_u32 v{VA}, s31, v{VT}
v_add_u32 v{VA+1}, {16*1152}, v{VA}
v_add_u32 v{VA+2}, {32*1152}, v{VA}
v_add_u32 v{VA+3}, {48*1152}, v{VA}
s_mul_i32 s32, s28, 288              ; n0*2 bytes
s_mul_i32 s33, s24, {32*(1152 if 'B' in VARIANT else 9216)}
s_add_u32 s33, s33, s32              ; s_wslab
s_mul_i32 s34, s24, {SLAB}           ; s_m0
v_lshlrev_b32 v{VT+2}, 3, v{VT+1}
""")
    if 'A' in VARIANT:
        a(f"""
s_mul_i32 s31, s30, {4*18*1024}
s_add_u32 s31, s31, {act_base}
v_lshlrev_b32 v{VT}, 4, v{L}
v_add_u32 v{VA}, s31, v{VT}
v_add_u32 v{VA+1}, {18*1024}, v{VA}
v_add_u32 v{VA+2}, {2*18*1024}, v{VA}
v_add_u32 v{VA+3}, {3*18*1024}, v{VA}
s_mov_b32 s41, 4096
s_mov_b32 s42, 8192
s_mov_b32 s43, 12288
s_mov_b32 s44, 16384
""")
    bias_ids = []
    def pro(vm):
        for nt in range(9):
            r = acc(2, nt)
            a(f"buffer_load_dwordx2 v[{r}:{r+1}], v{VT+2}, s[20:23], s32 offen offset:{nt*32}")
            bias_ids.append(vm.issue())
        vm.wait(bias_ids[-1])
        for nt in range(9):
            r = acc(2, nt); d = acc(3, nt)
            a(f"v_lshlrev_b32 v{d}, 16, v{r}\nv_and_b32 v{d+1}, 0xffff0000, v{r}\nv_lshlrev_b32 v{d+2}, 16, v{r+1}\nv_and_b32 v{d+3}, 0xffff0000, v{r+1}")
    def act_stepA(s):
        q, r = divmod(s, 4)
        return (0 if q == 0 else f"s{40+q}", r * 1024)
    LDW = 1152 if 'B' in VARIANT else 9216
    cfg = dict(act_srd=12, act_step=(act_stepA if 'A' in VARIANT else lambda s: (0, s*64)), w_srd=8, s_wslab=33, w_stage_stride=128*LDW,
               tr2=8*288, first_c=lambda mt, nt: f"v[{acc(3,nt)}:{acc(3,nt)+3}]", s_m0=34, stmp=35, prologue_extra=pro, warm=WARM)
    gemm_core(a, cfg)
    a(f"""
v_mov_b32 v{VT}, {f32hex(GELU_C0)}
s_mov_b32 s36, {f32hex(GELU_C1)}
v_lshlrev_b32 v{VT+1}, 4, v{L}       ; lane*16
s_mul_i32 s37, s30, {4*147456}
s_add_u32 s37, s37, {WS_H}
s_mul_i32 s38, s28, 9                ; T0
""")
    for nt in range(9):
        a(f"""
s_add_u32 s39, s38, {nt}
s_lshr_b32 s40, s39, 1
s_lshl_b32 s40, s40, 10
s_and_b32 s39, s39, 1
s_lshl_b32 s39, s39, 3
s_add_u32 s40, s40, s39
s_add_u32 s40, s40, s37
""")
        for mt in range(4):
            r = acc(mt, nt); t = ACT + ((nt*4+mt) % 8) * 8
            gelu4(a, r, t, VT, 36)
            a(f"v_cvt_pk_bf16_f32 v{t+4}, v{r}, v{r+1}\nv_cvt_pk_bf16_f32 v{t+5}, v{r+2}, v{r+3}")
            a(f"buffer_store_dwordx2 v[{t+4}:{t+5}], v{VT+1}, s[12:15], s40 offen")
            if mt < 3: a(f"s_add_u32 s40, s40, 147456")
    stamp(a)
    stamp_flush(a, swg, 24, 0x8000000)
    a("s_endpgm")

def role_g2(a, swg):
    stamp(a)
    a(f"""
s_load_dwordx2 s[4:5], s[0:1], {KA_W2}
s_load_dwordx2 s[6:7], s[0:1], {KA_WS}
v_lshrrev_b32 v{VT}, 6, v0
v_and_b32 v{VT+7}, 63, v0            ; lane
v_readfirstlane_b32 s24, v{VT}       ; wave
s_and_b32 s25, s{swg}, 7             ; ks
s_lshr_b32 s26, s{swg}, 3
s_and_b32 s27, s26, 7                ; Mt
s_lshr_b32 s28, s26, 3               ; Nt
s_waitcnt lgkmcnt(0)
""")
    srd(a, 8, 4, D*F*2)
    srd(a, 12, 6, WS_BYTES)
    a(f"s_add_u32 s29, s25, 1\ns_mul_i32 s10, s29, {576*1152}")
    L = VT + 7
    setup_dma_offsets(a, L, 1152, "perm", VT, VT+1, VT+2)
    setup_lds_read(a, L, "perm", VT, VT+1)
    a(f"""
s_lshl_b32 s30, s27, 2
s_add_u32 s30, s30, s24
s_mul_i32 s31, s30, {4*147456}
s_mul_i32 s29, s25, {18*1024}
s_add_u32 s31, s31, s29
s_add_u32 s31, s31, {WS_H}
v_lshlrev_b32 v{VT}, 4, v{L}
v_add_u32 v{VA}, s31, v{VT}
v_add_u32 v{VA+1}, 147456, v{VA}
v_add_u32 v{VA+2}, {2*147456}, v{VA}
v_add_u32 v{VA+3}, {3*147456}, v{VA}
s_mul_i32 s32, s28, 288              ; n0*2
s_mul_i32 s33, s24, {32*1152}
s_add_u32 s33, s33, s32
s_mul_i32 s29, s25, {576*1152}
s_add_u32 s33, s33, s29              ; s_wslab
s_mul_i32 s34, s24, {SLAB}
s_mov_b32 s41, 4096
s_mov_b32 s42, 8192
s_mov_b32 s43, 12288
s_mov_b32 s44, 16384
""")
    def act_step(s):
        q, r = divmod(s, 4)
        return (0 if q == 0 else f"s{40+q}", r * 1024)
    cfg = dict(act_srd=12, act_step=act_step, w_srd=8, s_wslab=33, w_stage_stride=128*1152,
               tr2=16*288, first_c=lambda mt, nt: "0", s_m0=34, stmp=35, warm=WARM)
    gemm_core(a, cfg)
    a(f"""
v_lshlrev_b32 v{VT+1}, 3, v{L}       ; lane*8
s_lshl_b32 s37, s25, 7               ; ks*128
s_lshl_b32 s38, s30, 2
s_add_u32 s37, s37, s38              ; + mtile0
s_mul_i32 s37, s37, {36*512}
s_mul_i32 s38, s28, {9*512}
s_add_u32 s37, s37, s38
s_add_u32 s37, s37, {WS_P}
""")
    for mt in range(4):
        for nt in range(9):
            r = acc(mt, nt); t = ACT + ((nt*4+mt) % 16) * 2
            a(f"v_cvt_pk_bf16_f32 v{t}, v{r}, v{r+1}\nv_cvt_pk_bf16_f32 v{t+1}, v{r+2}, v{r+3}")
            off = nt * 512
            if off >= 4096:
                a(f"s_add_u32 s38, s37, 4096")
                a(f"buffer_store_dwordx2 v[{t}:{t+1}], v{VT+1}, s[12:15], s38 offen offset:{off-4096}")
            else:
                a(f"buffer_store_dwordx2 v[{t}:{t+1}], v{VT+1}, s[12:15], s37 offen offset:{off}")
        if mt < 3: a(f"s_add_u32 s37, s37, {36*512}")
    stamp(a)
    stamp_flush(a, swg, 24, 0x8100000)
    a("s_endpgm")
```

```python
from asmlib import *
import numpy as np

S, D, F = 2048, 576, 4608
WS_XN = 0x0000000
WS_Y  = 0x0400000
WS_WT = 0x0800000
WS_Z  = 0x0C00000
WS_V  = 0x1200000
WS_H  = 0x2000000
WS_P  = 0x4000000
WS_BYTES = 268435456

KA_X, KA_WR, KA_WI, KA_BX, KA_W1, KA_B1, KA_W2, KA_B2, KA_OUT, KA_DBG, KA_WS = [8*i for i in range(11)]

def f32hex(x):
    return "0x%08x" % np.float32(x).view(np.uint32)

def swz_reduce32(a, v, t):
    for off in (0x041F, 0x081F, 0x101F, 0x201F, 0x401F):
        a(f"ds_swizzle_b32 v{t}, v{v} offset:{off:#x}\ns_waitcnt lgkmcnt(0)\nv_add_f32 v{v}, v{v}, v{t}")

def rnd_bf16(a, d, s):
    a(f"v_cvt_pk_bf16_f32 v{d}, v{s}, v{s}\nv_lshlrev_b32 v{d}, 16, v{d}")

def role_ln(a, swg):
    a(f"""
s_load_dwordx2 s[4:5], s[0:1], {KA_X}
s_load_dwordx2 s[6:7], s[0:1], {KA_WS}
s_waitcnt lgkmcnt(0)
""")
    srd(a, 8, 4, S*D*2)
    srd(a, 12, 6, WS_BYTES)
    a(f"""
v_lshrrev_b32 v1, 5, v0
s_lshl_b32 s16, s{swg}, 3
v_add_u32 v1, s16, v1                ; row
v_mul_u32_u24 v1, 1152, v1
v_and_b32 v2, 31, v0
v_lshl_add_u32 v1, v2, 2, v1
""")
    for i in range(9):
        a(f"buffer_load_dword v{4+i}, v1, s[8:11], 0 offen offset:{128*i}")
    a(f"""
v_lshrrev_b32 v3, 5, v0
s_lshl_b32 s16, s{swg}, 3
v_add_u32 v3, s16, v3                ; row
v_lshrrev_b32 v45, 10, v3            ; rho
v_and_b32 v46, 31, v3                ; b
v_lshl_add_u32 v45, v45, 5, v46      ; rho*32+b
v_bfe_u32 v46, v3, 8, 1              ; tau = (a/8)%2 = bit 8 of row
v_lshl_add_u32 v45, v45, 1, v46      ; mtile
v_mul_u32_u24 v45, 18432, v45
v_bfe_u32 v46, v3, 9, 1              ; a/16
v_bfe_u32 v47, v3, 5, 3              ; a%8
v_lshl_add_u32 v46, v46, 3, v47      ; i
v_lshl_add_u32 v45, v46, 4, v45
v_bfe_u32 v46, v0, 4, 1              ; j/16
v_lshl_add_u32 v45, v46, 10, v45
v_bfe_u32 v46, v0, 2, 2              ; (j%16)/4
v_lshl_add_u32 v45, v46, 8, v45
v_and_b32 v46, 3, v0
v_lshl_add_u32 v45, v46, 2, v45
""")
    a("s_waitcnt vmcnt(0)")
    X = 16
    for i in range(9):
        a(f"v_lshlrev_b32 v{X+2*i}, 16, v{4+i}\nv_and_b32 v{X+2*i+1}, 0xffff0000, v{4+i}")
    a(f"s_mov_b32 s17, {f32hex(1.0/576)}\ns_mov_b32 s18, {f32hex(1e-5)}")
    for it, base in enumerate((WS_XN, WS_Y)):
        a(f"v_add_f32 v40, v{X}, v{X+1}")
        for i in range(2, 18):
            a(f"v_add_f32 v40, v40, v{X+i}")
        swz_reduce32(a, 40, 41)
        a("v_mul_f32 v40, s17, v40")
        a(f"v_sub_f32 v42, v{X}, v40\nv_mul_f32 v43, v42, v42")
        for i in range(1, 18):
            a(f"v_sub_f32 v42, v{X+i}, v40\nv_fmac_f32 v43, v42, v42")
        swz_reduce32(a, 43, 41)
        a("v_mul_f32 v43, s17, v43")
        rnd_bf16(a, 40, 40)
        rnd_bf16(a, 43, 43)
        a("v_add_f32 v43, s18, v43")
        rnd_bf16(a, 43, 43)
        a("v_sqrt_f32 v43, v43\ns_nop 0")
        rnd_bf16(a, 43, 43)
        a("v_rcp_f32 v43, v43\ns_nop 0")
        for i in range(9):
            a(f"""
v_sub_f32 v{X+2*i}, v{X+2*i}, v40
v_sub_f32 v{X+2*i+1}, v{X+2*i+1}, v40
v_cvt_pk_bf16_f32 v44, v{X+2*i}, v{X+2*i+1}
v_lshlrev_b32 v{X+2*i}, 16, v44
v_and_b32 v{X+2*i+1}, 0xffff0000, v44
v_mul_f32 v{X+2*i}, v{X+2*i}, v43
v_mul_f32 v{X+2*i+1}, v{X+2*i+1}, v43
v_cvt_pk_bf16_f32 v{4+i}, v{X+2*i}, v{X+2*i+1}
v_lshlrev_b32 v{X+2*i}, 16, v{4+i}
v_and_b32 v{X+2*i+1}, 0xffff0000, v{4+i}
""")
        for i in range(9):
            if i % 2 == 0: a(f"s_mov_b32 s19, {base + i*2048}")
            a(f"buffer_store_dword v{4+i}, v45, s[12:15], s19 offen offset:{2048*(i%2)}")
        a("s_waitcnt vmcnt(0)")
    a("s_endpgm")

WT_LDS_HALF = 37 * 1024
def role_wt(a, swg):
    a(f"""
s_load_dwordx2 s[4:5], s[0:1], {KA_WR}
s_load_dwordx2 s[6:7], s[0:1], {KA_WI}
s_load_dwordx2 s[16:17], s[0:1], {KA_WS}
s_waitcnt lgkmcnt(0)
""")
    srd(a, 8, 4, S*289*2)
    srd(a, 12, 6, S*289*2)
    srd(a, 20, 16, WS_BYTES)
    a(f"""
v_lshrrev_b32 v1, 6, v0
s_nop 0
v_readfirstlane_b32 s24, v1
v_and_b32 v2, 63, v0                 ; lane
v_lshlrev_b32 v3, 4, v2              ; lane*16
s_mul_i32 s25, s{swg}, 36992
s_lshl_b32 s26, s24, 10              ; wave*1024
s_add_u32 s25, s25, s26
""")
    for it in range(10):
        lab = a.uid("WT_skip")
        if it == 9:
            a(f"s_cmp_lg_u32 s24, 0\ns_cbranch_scc1 {lab}")
        a(f"""
s_add_u32 s27, s26, {it*4096}
s_mov_b32 m0, s27
s_add_u32 s28, s25, {it*4096}
buffer_load_dwordx4 v3, s[8:11], s28 offen lds
s_add_u32 s27, s27, {WT_LDS_HALF}
s_mov_b32 m0, s27
s_nop 0
buffer_load_dwordx4 v3, s[12:15], s28 offen lds
""")
        if it == 9:
            a.label(lab)
    a("s_waitcnt vmcnt(0)\ns_barrier")
    a(f"""
v_mul_u32_u24 v4, 578, v2
s_lshl_b32 s27, s24, 1
v_add_u32 v4, s27, v4
v_and_b32 v5, 1, v2                  ; pi
v_lshrrev_b32 v6, 1, v2              ; c
v_lshlrev_b32 v5, 12, v5             ; pi*16*256
v_lshl_add_u32 v5, v6, 2, v5         ; + c*4
s_lshr_b32 s28, s{swg}, 3            ; d/8
s_lshl_b32 s28, s28, 2
s_and_b32 s29, s{swg}, 3
s_add_u32 s28, s28, s29              ; v
s_lshl_b32 s28, s28, 8               ; v*256
s_lshr_b32 s29, s{swg}, 2
s_and_b32 s29, s29, 1
s_lshl_b32 s29, s29, 7               ; h*128
s_add_u32 s28, s28, s29
s_lshl_b32 s29, s24, 13              ; k*8192 (k=wave)
s_add_u32 s28, s28, s29
s_add_u32 s28, s28, {WS_WT}
s_mov_b32 s30, s24                   ; k
""")
    lab = a.uid("WT_loop")
    a.label(lab)
    a(f"""
ds_read_u16 v8, v4
ds_read_u16 v9, v4 offset:{WT_LDS_HALF}
s_waitcnt lgkmcnt(0)
v_lshl_or_b32 v8, v9, 16, v8
buffer_store_dword v8, v5, s[20:23], s28 offen
v_add_u32 v4, 8, v4
s_add_u32 s28, s28, 32768
s_add_u32 s30, s30, 4
s_cmp_lt_u32 s30, 289
s_cbranch_scc1 {lab}
s_endpgm
""")
```

```python
import sys; sys.path.insert(0, "gen")
from roles1 import *
import gemm
from gemm import *
from fft import *
out = sys.argv[1] if len(sys.argv) > 1 else "v3.s"
a = Asm()
a("""; v3
; @launch kernel=k0_kernel grid=(288,1,1) block=(256,1,1) lds=75776
; @launch kernel=k1_kernel grid=(544,1,1) block=(256,1,1) lds=73728
; @launch kernel=k2_kernel grid=(400,1,1) block=(256,1,1) lds=73728
; @launch kernel=k3_kernel grid=(192,1,1) block=(384,1,1) lds=73728""")
a('.amdgcn_target "amdgcn-amd-amdhsa--gfx950"\n.text')
kernel_header(a, "k0_kernel")
a("s_cmp_ge_u32 s2, 256\ns_cbranch_scc1 K0_wt")
role_ln(a, 2)
a.label("K0_wt")
a("s_sub_u32 s3, s2, 256\ns_cmp_ge_u32 s3, 32\ns_cbranch_scc1 K0_end")
role_wt(a, 3)
a.label("K0_end")
a("s_endpgm")
kernel_header(a, "k1_kernel")
a("s_cmp_ge_u32 s2, 256\ns_cbranch_scc1 K1_rd")
role_g1(a, 2)
a.label("K1_rd")
a("s_sub_u32 s3, s2, 256\ns_cmp_ge_u32 s3, 288\ns_cbranch_scc1 K1_end")
role_rd(a, 3)
a.label("K1_end")
a("s_endpgm")
kernel_header(a, "k2_kernel")
a("s_cmp_ge_u32 s2, 256\ns_cbranch_scc1 K2_cf")
role_g2(a, 2)
a.label("K2_cf")
a("s_sub_u32 s3, s2, 256\ns_cmp_ge_u32 s3, 144\ns_cbranch_scc1 K2_end")
role_cf(a, 3)
a.label("K2_end")
a("s_endpgm")
kernel_header(a, "k3_kernel")
a("s_cmp_ge_u32 s2, 192\ns_cbranch_scc1 K3_end")
role_ri(a, 2)
a.label("K3_end")
a("s_endpgm")
a('.section .rodata,"a"\n.p2align 6')
a(kernel_desc("k0_kernel", 64, 40))
a(kernel_desc("k1_kernel", 256, 64))
a(kernel_desc("k2_kernel", 256, 64))
a(kernel_desc("k3_kernel", 256, 64))
emit_bytes(a, "tab_cf", cf_tables())
emit_big_tables(a)
open(out, "w").write(a.text())
```

```python
from asmlib import *
from roles1 import *
from fft import *
import gemm
from gemm import stamp, stamp_flush

L_TA, L_TB1, L_TW1, L_DATA, L_TB4, L_TW2 = 0, 12288, 24576, 34816, 34816, 47104

def role_cf2(a, swg, prio=None):
    stamp(a)
    a(f"""
s_load_dwordx2 s[6:7], s[0:1], {KA_WS}
v_lshrrev_b32 v1, 6, v0
v_and_b32 v2, 63, v0
v_readfirstlane_b32 s24, v1          ; wave w
s_and_b32 s25, s{swg}, 1             ; pi
s_lshr_b32 s26, s{swg}, 1
s_and_b32 s26, s26, 1                ; par
s_lshr_b32 s27, s{swg}, 2
""")
    if prio is not None: a(f"s_setprio {prio}")
    table_srd(a, 8, "tab_cf", 69632, 4)
    a(f"""
v_lshlrev_b32 v3, 4, v2
v_lshlrev_b32 v4, 2, v2
s_lshl_b32 s28, s27, 2
s_add_u32 s28, s28, s24
s_lshl_b32 s29, s28, 1
s_add_u32 s29, s29, s26
s_mul_i32 s30, s26, 288
s_lshl_b32 s31, s28, 1
s_add_u32 s30, s30, s31
s_cmp_eq_u32 s27, 36
s_cselect_b32 s30, 1, s30
s_and_b32 s43, s30, 7
s_and_b32 s31, s30, 8
s_lshl_b32 s31, s31, 4               ; (j0)*16 : 0 or 128
s_lshr_b32 s30, s30, 4
s_lshl_b32 s30, s30, 12
s_add_u32 s30, s30, s31
s_lshl_b32 s31, s25, 11
s_add_u32 s30, s30, s31
s_add_u32 s30, s30, {WS_Z}
; DMA: wave w, instr i (0..7): runs (hg = 2w + i/4, b = 8*(i%4) + lane/8), pos p = lane%8, source piece = p ^ (b&7) = p ^ (lane/8)
v_lshrrev_b32 v11, 3, v2             ; lane/8
v_and_b32 v12, 7, v2
v_xor_b32 v12, v12, v11
v_mul_u32_u24 v11, {36*4096}, v11
v_lshl_add_u32 v11, v12, 4, v11
v_and_b32 v12, 7, v2
v_xor_b32 v13, s43, v12
v_lshlrev_b32 v13, 4, v13
v_lshl_add_u32 v13, v2, 7, v13       ; lane*128 = (h*32+b)*128 ✓.
v_xor_b32 v14, 16, v13
s_mov_b32 s32, 1.0
s_cmp_eq_u32 s29, 0
s_cselect_b32 s33, 1, 0
s_cmp_eq_u32 s29, 288
s_cselect_b32 s33, 1, s33
s_cmp_eq_u32 s33, 0
s_cbranch_scc1 CF_notspecial
s_mov_b32 s32, 0.5
CF_notspecial:
s_mul_i32 s34, s25, 12288
s_mul_i32 s35, s25, 24576
s_lshl_b32 s36, s25, 13
s_add_u32 s37, s36, 53248
s_add_u32 s36, s36, 36864
s_mul_i32 s40, s24, 3072
s_lshl_b32 s41, s24, 11
s_waitcnt lgkmcnt(0)
""")
    srd(a, 12, 6, WS_BYTES)
    a(f"s_lshl_b32 s44, s24, 9\ns_add_u32 s44, s44, s30\ns_lshl_b32 s45, s24, 13")
    for i in range(8):
        a(f"s_add_u32 m0, s45, {L_DATA + i*1024}\ns_add_u32 s42, s44, {(i//4)*256 + (i%4)*8*36*4096}")
        a("buffer_load_dwordx4 v11, s[12:15], s42 offen lds")
    def dma(src, lds, n, sshare):
        a(f"s_add_u32 s42, {src}, s{sshare}\ns_add_u32 m0, s{sshare}, {lds}\ns_nop 0")
        for i in range(n):
            a(f"buffer_load_dwordx4 v3, s[8:11], s42 offen offset:{i*1024} lds")
    dma("s34", L_TB1, 3, 40)
    dma("s36", L_TW1, 2, 41)
    dma("0", L_TA, 3, 40)
    a(f"s_min_u32 s38, s29, 288\ns_lshl_b32 s38, s38, 13\ns_lshl_b32 s39, s25, 12\ns_add_u32 s38, s38, s39\ns_add_u32 s38, s38, {WS_WT}")
    for v in range(16):
        a(f"buffer_load_dword v{CF_W+v}, v4, s[12:15], s38 offen offset:{v*256}")
    stamp(a)
    a("s_waitcnt vmcnt(16)\ns_barrier")
    stamp(a)
    def rd_tab(reg, lds, n):
        for i in range(n):
            a(f"ds_read_b128 v[{reg+4*i}:{reg+4*i+3}], v3 offset:{lds+i*1024}")
    for part, va in ((0, 13), (1, 14)):
        for hl in range(2):
            for q in range(2):
                r = CF_D + part*16 + hl*8 + q*4
                a(f"ds_read_b128 v[{r}:{r+3}], v{va} offset:{L_DATA + (hl*4+2*q)*4096}")
    a("s_waitcnt lgkmcnt(0)")
    rd_tab(CF_TB, L_TB1, 12)
    a("s_cmp_eq_u32 s33, 0\ns_cbranch_scc1 CF_hasim")
    for j in range(16): a(f"v_mov_b32 v{CF_D+16+j}, 0")
    a.label("CF_hasim")
    a("s_barrier")
    dma("s35", L_TB4, 3, 40)
    dma("s37", L_TW2, 2, 41)
    a("s_waitcnt lgkmcnt(0)")
    rd_tab(CF_TW, L_TW1, 8)
    rd_tab(CF_TA, L_TA, 6)
    cf_stage(a, CF_TB, True, False)
    stamp(a)
    rd_tab(CF_TA + 24, L_TA + 6144, 6)
    a("s_waitcnt lgkmcnt(12)")
    cf_twiddle(a, False)
    a("s_waitcnt lgkmcnt(0)")
    cf_split(a)
    stamp(a)
    cf_stage(a, CF_TA, False, False)
    stamp(a)
    a("s_waitcnt vmcnt(0) lgkmcnt(0)")
    a("s_barrier")
    a("s_cmp_lg_u32 s27, 36\ns_cbranch_scc1 CF_go\ns_cmp_eq_u32 s24, 0\ns_cbranch_scc1 CF_go\ns_endpgm")
    a.label("CF_go")
    rd_tab(CF_TW, L_TW2, 8)
    for v in range(16):
        xr, xi, w = CF_O+v, CF_O+16+v, CF_W+v
        t = CF_T + 4 * (v % 2)
        a(f"""v_lshlrev_b32 v{t}, 16, v{w}
v_and_b32 v{t+1}, 0xffff0000, v{w}
v_mul_f32 v{t}, s32, v{t}
v_mul_f32 v{t+1}, s32, v{t+1}
v_mul_f32 v{t+2}, v{xr}, v{t}
v_mul_f32 v{t+3}, v{xr}, v{t+1}
v_fma_f32 v{xr}, -v{xi}, v{t+1}, v{t+2}
v_fma_f32 v{xi}, v{xi}, v{t}, v{t+3}""")
    cf_split(a)
    a("s_waitcnt lgkmcnt(0)")
    rd_tab(CF_TB, L_TB4, 12)
    cf_stage(a, CF_TA, True, True)
    a("s_waitcnt lgkmcnt(0)")
    cf_twiddle(a, True)
    cf_split(a)
    cf_stage(a, CF_TB, False, True)
    stamp(a)
    a("s_cmp_lg_u32 s27, 36\ns_cbranch_scc1 CF_out")
    a(f"""
v_and_b32 v5, 31, v2
v_lshrrev_b32 v6, 5, v2
v_lshlrev_b32 v6, 9, v6              ; h*4*32*4
v_lshl_add_u32 v5, v5, 2, v6
s_lshl_b32 s38, s25, 12
s_add_u32 s38, s38, {WS_V288}
""")
    for v in range(16):
        a(f"buffer_store_dword v{CF_O+v}, v5, s[12:15], s38 offen offset:{(8*(v//4)+v%4)*128}")
    a("s_endpgm")
    a.label("CF_out")
    a(f"""
v_and_b32 v5, 31, v2
v_mul_u32_u24 v5, {CF_LDS_STRIDE}, v5
v_lshrrev_b32 v6, 5, v2
v_lshl_add_u32 v5, v6, 6, v5
s_lshl_b32 s38, s24, 2
v_add_u32 v5, s38, v5
""")
    for v in range(16):
        xr, xi = CF_O+v, CF_O+16+v
        t = CF_T + 4 * (v % 2)
        off = (((v // 4) % 2) * 16 + 8 * (v // 8) + v % 4) * 16
        a(f"""v_cvt_pk_bf16_f32 v{t}, v{xr}, v{xi}
v_lshlrev_b32 v{t+1}, 16, v{t}
v_and_b32 v{t+2}, 0xffff0000, v{t}
v_sub_f32 v{t+1}, v{xr}, v{t+1}
v_sub_f32 v{t+2}, v{xi}, v{t+2}
v_cvt_pk_bf16_f32 v{t+1}, v{t+1}, v{t+2}
ds_write_b32 v5, v{t} offset:{off}
ds_write_b32 v5, v{t+1} offset:{off+CF_LDS_HALF}""")
    a(f"""
v_lshrrev_b32 v6, 5, v2
v_and_b32 v7, 31, v2
v_mul_u32_u24 v8, {CF_LDS_STRIDE}, v6
v_lshl_add_u32 v8, v7, 4, v8
s_mul_i32 s38, s24, {8*CF_LDS_STRIDE}
v_add_u32 v8, s38, v8
v_lshrrev_b32 v9, 4, v2
v_mul_u32_u24 v9, {9*2048}, v9
v_and_b32 v10, 15, v2
v_lshl_add_u32 v9, v10, 4, v9
s_lshl_b32 s38, s25, 1
s_add_u32 s38, s38, s26
s_lshl_b32 s38, s38, 6
s_lshl_b32 s39, s24, 4
s_add_u32 s38, s38, s39
s_mul_i32 s38, s38, {9*2048}
s_lshr_b32 s39, s27, 2
s_lshl_b32 s39, s39, 11
s_add_u32 s38, s38, s39
s_and_b32 s39, s27, 3
s_lshl_b32 s39, s39, 8
s_add_u32 s38, s38, s39
s_add_u32 s38, s38, {WS_V}
s_waitcnt lgkmcnt(0)
""")
    stamp(a)
    a("s_barrier")
    for j in range(4):
        for hl in range(2):
            r = 16 + (j*2+hl)*4
            a(f"ds_read_b128 v[{r}:{r+3}], v8 offset:{j*2*CF_LDS_STRIDE + hl*CF_LDS_HALF}")
    for j in range(4):
        for hl in range(2):
            r = 16 + (j*2+hl)*4
            a(f"s_waitcnt lgkmcnt({7-(j*2+hl)})")
            a(f"buffer_store_dwordx4 v[{r}:{r+3}], v9, s[12:15], s38 offen offset:{hl*1024} sc1")
        if j < 3: a(f"s_add_u32 s38, s38, {4*9*2048}")
    stamp(a)
    stamp_flush(a, swg, 24, 0x8400000)
    a("s_endpgm")
```

```python
from asmlib import *
from roles1 import *
import numpy as np
import gemm
from gemm import stamp, stamp_flush

def bf16_rne(x):
    x = np.asarray(x, dtype=np.float32)
    u = x.view(np.uint32).astype(np.uint64)
    r = ((u + 0x7FFF + ((u >> 16) & 1)) >> 16).astype(np.uint16)
    return r
def bf16_f(u):
    return (np.asarray(u, dtype=np.uint32) << 16).view(np.float32)
def split_hl(x64):
    x64 = np.asarray(x64, dtype=np.float64)
    hi = bf16_rne(x64.astype(np.float32))
    lo = bf16_rne((x64 - bf16_f(hi).astype(np.float64)).astype(np.float32))
    return hi, lo

def slot_info(slot):
    par, rem = divmod(slot, 288); cg, jj = divmod(rem, 8)
    w, im = divmod(jj, 2)
    k = 2 * (4 * cg + w) + par
    if im and k == 0: return 288, 0
    return k, im

def emit_big_tables(a):
    c = np.cos(2 * np.pi * np.arange(576) / 576)
    c[np.abs(c) < 1e-15] = 0.0
    hi, lo = split_hl(c)
    for i in range(576):
        a(f".set c0_{i}, {hi[i]}\n.set c1_{i}, {lo[i]}")
    for s in range(576):
        k, im = slot_info(s)
        a(f".set sk_{s}, {k}\n.set so_{s}, {144*im}")
    a(""".altmacro
.macro EH idx
.short c0_\\idx
.endm
.macro EL idx
.short c1_\\idx
.endm
.macro GETK slot
.set curk, sk_\\slot
.set curo, so_\\slot
.endm
.macro TFFRAG e
 .set g_, 0
 .rept 4
  .set j_, 0
  .rept 16
   GETK %(16*st_+j_)
   .set n_, 32*s_+8*g_
   .rept 8
    \\e %((n_*curk+curo)%576)
    .set n_, n_+1
   .endr
   .set j_, j_+1
  .endr
  .set g_, g_+1
 .endr
.endm
.macro TIFRAG e
 .set g_, 0
 .rept 4
  .set i_, 0
  .rept 16
   .set sl_, par_*288+(4*s_+g_)*8
   .rept 8
    GETK %(sl_)
    \\e %(((16*nt_+i_)*curk+curo)%576)
    .set sl_, sl_+1
   .endr
   .set i_, i_+1
  .endr
  .set g_, g_+1
 .endr
.endm
.p2align 8
tab_tf:
.set st_, 0
.rept 36
 .set s_, 0
 .rept 9
  TFFRAG EH
  TFFRAG EL
  .set s_, s_+1
 .endr
 .set st_, st_+1
.endr
.set sk_1, 0
.set so_1, 144
.p2align 8
tab_ti:
.set nt_, 0
.rept 18
 .set par_, 0
 .rept 2
  .set s_, 0
  .rept 9
   TIFRAG EH
   TIFRAG EL
   .set s_, s_+1
  .endr
  .set par_, par_+1
 .endr
 .set nt_, nt_+1
.endr
.noaltmacro
""")

def dord(q, h, t): return 16 * q + 8 * (t // 4) + 4 * h + t % 4
def dreg(v, h): return 8 * (v // 4) + 4 * h + v % 4

def cf_tables():
    out = []
    def mat(theta_fn):
        C = np.zeros((2, 64, 8)); Sn = np.zeros((2, 64, 8))
        for q in range(2):
            for l in range(64):
                for t in range(8):
                    th = theta_fn(dord(q, l // 32, t), l % 32)
                    C[q, l, t] = np.cos(th); Sn[q, l, t] = np.sin(th)
        C[np.abs(C) < 1e-15] = 0; Sn[np.abs(Sn) < 1e-15] = 0
        parts = []
        for M in (C, Sn, -Sn):
            hi, lo = split_hl(M)
            parts += [hi, lo]
        return np.stack(parts).astype(np.uint16).tobytes()
    out.append(mat(lambda k, o: 2 * np.pi * k * o / 32))
    out.append(mat(lambda a_, c_: 2 * np.pi * a_ * (2 * c_ + 1) / 64))
    out.append(mat(lambda c_, a_: 2 * np.pi * a_ * (2 * c_ + 1) / 64))
    def tw(fn, scale):
        T = np.zeros((32, 64))
        for v in range(16):
            for l in range(64):
                th = fn(dreg(v, l // 32), l % 32)
                T[v, l] = np.cos(th) * scale; T[16 + v, l] = np.sin(th) * scale
        return np.ascontiguousarray(T.reshape(8, 4, 64).transpose(0, 2, 1)).astype(np.float32).tobytes()
    for pi in range(2): out.append(tw(lambda b_, c_: 2 * np.pi * b_ * (2 * c_ + pi) / 2048, 1.0))
    for pi in range(2): out.append(tw(lambda c_, b_: 2 * np.pi * b_ * (2 * c_ + pi) / 2048, 2.0 / (S * D)))
    return b"".join(out)

def emit_bytes(a, label, data):
    a(f".p2align 8\n{label}:")
    u = np.frombuffer(data, dtype=np.uint32)
    for i in range(0, len(u), 8):
        a(".long " + ",".join("0x%x" % x for x in u[i:i+8]))

def table_srd(a, d, label, nbytes, tmp):
    a(f"""s_getpc_b64 s[{tmp}:{tmp+1}]
s_add_u32 s{tmp}, s{tmp}, {label}@rel32@lo+4
s_addc_u32 s{tmp+1}, s{tmp+1}, {label}@rel32@hi+12""")
    srd(a, d, tmp, nbytes)

def split_pairs(a, src, n, hi, lo, t):
    for j in range(n // 2):
        x0, x1 = src + 2*j, src + 2*j + 1
        t0 = t + 2 * (j % 2)
        a(f"""v_cvt_pk_bf16_f32 v{hi+j}, v{x0}, v{x1}
v_lshlrev_b32 v{t0}, 16, v{hi+j}
v_and_b32 v{t0+1}, 0xffff0000, v{hi+j}
v_sub_f32 v{t0}, v{x0}, v{t0}
v_sub_f32 v{t0+1}, v{x1}, v{t0+1}
v_cvt_pk_bf16_f32 v{lo+j}, v{t0}, v{t0+1}""")

def role_rd(a, swg, prio=None):
    stamp(a)
    a(f"""
s_load_dwordx2 s[6:7], s[0:1], {KA_WS}
v_lshrrev_b32 v1, 6, v0
v_and_b32 v2, 63, v0                 ; lane
v_readfirstlane_b32 s24, v1          ; wave
s_and_b32 s25, s{swg}, 31            ; b
s_lshr_b32 s26, s{swg}, 5            ; sg
s_lshl_b32 s27, s26, 2
s_add_u32 s27, s27, s24              ; st
""")
    if prio is not None: a(f"s_setprio {prio}")
    table_srd(a, 8, "tab_tf", 36*18*1024, 4)
    a("s_waitcnt lgkmcnt(0)")
    srd(a, 12, 6, WS_BYTES)
    a(f"""
v_lshlrev_b32 v3, 4, v2              ; lane*16
s_lshr_b32 s28, s24, 1
s_lshl_b32 s28, s28, 5
s_add_u32 s28, s28, s25
s_lshl_b32 s28, s28, 1
s_and_b32 s29, s24, 1
s_add_u32 s28, s28, s29              ; mtile
s_mul_i32 s28, s28, {18*1024}
s_add_u32 s28, s28, {WS_XN}
s_mul_i32 s29, s24, {18*1024}
s_mul_i32 s30, s27, {18*1024}
""")
    for i in range(18):
        a(f"s_add_u32 m0, s29, {i*1024}\ns_add_u32 s31, s28, {i*1024}\nbuffer_load_dwordx4 v3, s[12:15], s31 offen lds")
    TB = 64
    for i in range(18):
        if i % 4 == 0: a(f"s_add_u32 s31, s30, {i*1024}")
        a(f"buffer_load_dwordx4 v[{TB+4*i}:{TB+4*i+3}], v3, s[8:11], s31 offen offset:{(i%4)*1024}")
    stamp(a)
    a("s_waitcnt vmcnt(18)\ns_barrier")
    stamp(a)
    AC = 16
    XF = 140
    a(f"v_add_u32 v4, {36*1024}, v3")
    def xread(s9):
        for T in range(4):
            for eta in range(2):
                r = XF + (s9 % 2) * 32 + (T*2+eta) * 4
                off = (T * 18 + 9 * eta + s9) * 1024
                if off >= 36*1024: a(f"ds_read_b128 v[{r}:{r+3}], v4 offset:{off-36*1024}")
                else: a(f"ds_read_b128 v[{r}:{r+3}], v3 offset:{off}")
    xread(0)
    for s9 in range(9):
        if s9 + 1 < 9:
            xread(s9 + 1)
            a(f"s_waitcnt lgkmcnt(8) vmcnt({16 - 2*s9})")
        else:
            a("s_waitcnt lgkmcnt(0) vmcnt(0)")
        for hl in range(2):
            for te in range(8):
                r = XF + (s9 % 2) * 32 + te * 4
                tb = TB + (s9 * 2 + hl) * 4
                d = AC + te * 4
                c = "0" if (s9 == 0 and hl == 0) else f"v[{d}:{d+3}]"
                a(f"v_mfma_f32_16x16x32_bf16 v[{d}:{d+3}], v[{r}:{r+3}], v[{tb}:{tb+3}], {c}")
    a("s_nop 7\ns_nop 3")
    stamp(a)
    a(f"s_cmp_lt_u32 s27, 18\ns_cselect_b32 s32, 1.0, -1.0")
    for T in range(4):
        for v in range(4):
            a(f"v_fma_f32 v{AC+T*8+v}, v{AC+T*8+4+v}, s32, v{AC+T*8+v}")
    for tau in range(2):
        for v in range(4):
            a(f"v_add_f32 v{48+tau*4+v}, v{AC+tau*8+v}, v{AC+(2+tau)*8+v}")
            a(f"v_sub_f32 v{56+tau*4+v}, v{AC+tau*8+v}, v{AC+(2+tau)*8+v}")
    split_pairs(a, 48, 8, 64, 68, 80)
    split_pairs(a, 56, 8, 72, 76, 80)
    a(f"""
s_mul_i32 s33, s25, 36
s_add_u32 s33, s33, s27
s_lshl_b32 s33, s33, 12
s_add_u32 s33, s33, {WS_Z}
buffer_store_dwordx4 v[64:67], v3, s[12:15], s33 offen sc1
buffer_store_dwordx4 v[68:71], v3, s[12:15], s33 offen offset:1024 sc1
buffer_store_dwordx4 v[72:75], v3, s[12:15], s33 offen offset:2048 sc1
buffer_store_dwordx4 v[76:79], v3, s[12:15], s33 offen offset:3072 sc1
""")
    stamp(a)
    stamp_flush(a, swg, 24, 0x8300000)
    a("s_endpgm")

CF_D  = 16
CF_O  = 48
CF_TA = 80
CF_TB = 128
CF_TW = 176
CF_W  = 208
CF_SV = 224
CF_T  = 240
CF_LDS_STRIDE = 528
CF_LDS_HALF = 32 * CF_LDS_STRIDE
def cf_stage(a, tab, data_as_a, inverse):
    Rh, Rl, Ih, Il = CF_D, CF_D+8, CF_D+16, CF_D+24
    Ch, Cl, Sh, Sl, Nh, Nl = [tab + 8*i for i in range(6)]
    if inverse: (Ph, Pl), (Qh, Ql) = (Nh, Nl), (Sh, Sl)
    else: (Ph, Pl), (Qh, Ql) = (Sh, Sl), (Nh, Nl)
    terms_r = [(Rh, Ch), (Rl, Ch), (Rh, Cl), (Ih, Ph), (Il, Ph), (Ih, Pl)]
    terms_i = [(Ih, Ch), (Il, Ch), (Ih, Cl), (Rh, Qh), (Rl, Qh), (Rh, Ql)]
    first = [True, True]
    for j in range(6):
        for q in range(2):
            for o, terms in enumerate((terms_r, terms_i)):
                dd, tt = terms[j]
                d = CF_O + 16 * o
                x = f"v[{dd+4*q}:{dd+4*q+3}]"; y = f"v[{tt+4*q}:{tt+4*q+3}]"
                if not data_as_a: x, y = y, x
                c = "0" if first[o] else f"v[{d}:{d+15}]"
                first[o] = False
                a(f"v_mfma_f32_32x32x16_bf16 v[{d}:{d+15}], {x}, {y}, {c}")
    a("s_nop 15\ns_nop 3")
def cf_twiddle(a, inverse):
    for v in range(16):
        xr, xi, c, s = CF_O+v, CF_O+16+v, CF_TW+v, CF_TW+16+v
        t = CF_T + 2 * (v % 2)
        if not inverse:
            a(f"v_mul_f32 v{t}, v{xr}, v{c}\nv_mul_f32 v{t+1}, v{xi}, v{c}\nv_fma_f32 v{t+1}, -v{xr}, v{s}, v{t+1}\nv_fma_f32 v{xr}, v{xi}, v{s}, v{t}\nv_mov_b32 v{xi}, v{t+1}")
        else:
            a(f"v_mul_f32 v{t}, v{xr}, v{c}\nv_mul_f32 v{t+1}, v{xi}, v{c}\nv_fma_f32 v{t+1}, v{xr}, v{s}, v{t+1}\nv_fma_f32 v{xr}, -v{xi}, v{s}, v{t}\nv_mov_b32 v{xi}, v{t+1}")
def cf_split(a):
    split_pairs(a, CF_O, 16, CF_D, CF_D+8, CF_T)
    split_pairs(a, CF_O+16, 16, CF_D+16, CF_D+24, CF_T)
    a("s_nop 1")

def role_cf(a, swg):
    stamp(a)
    a(f"""
s_load_dwordx2 s[6:7], s[0:1], {KA_WS}
v_lshrrev_b32 v1, 6, v0
v_and_b32 v2, 63, v0
v_readfirstlane_b32 s24, v1          ; wave w
s_and_b32 s25, s{swg}, 1             ; pi
s_lshr_b32 s26, s{swg}, 1
s_and_b32 s26, s26, 1                ; par
s_lshr_b32 s27, s{swg}, 2            ; cg
""")
    table_srd(a, 8, "tab_cf", 69632, 4)
    a("s_waitcnt lgkmcnt(0)")
    srd(a, 12, 6, WS_BYTES)
    a(f"""
v_lshlrev_b32 v3, 4, v2              ; lane*16
v_lshlrev_b32 v4, 2, v2              ; lane*4
s_lshl_b32 s28, s27, 2
s_add_u32 s28, s28, s24              ; 4cg+w
s_lshl_b32 s29, s28, 1
s_add_u32 s29, s29, s26              ; k
s_mul_i32 s30, s26, 288
s_lshl_b32 s31, s28, 1
s_add_u32 s30, s30, s31
s_and_b32 s31, s30, 15
s_lshl_b32 s31, s31, 4               ; j*16
s_lshr_b32 s30, s30, 4
s_lshl_b32 s30, s30, 12              ; st*4096
s_add_u32 s30, s30, s31
s_lshl_b32 s31, s25, 11
s_add_u32 s30, s30, s31
s_add_u32 s30, s30, {WS_Z}
s_add_u32 s31, s30, 16
v_and_b32 v11, 31, v2
v_mul_u32_u24 v11, {36*4096}, v11
v_lshrrev_b32 v12, 5, v2
v_lshl_add_u32 v11, v12, 8, v11
s_mov_b32 s32, 1.0
s_mov_b32 s33, 0
s_cmp_lg_u32 s29, 0
s_cbranch_scc1 CF_notspecial
s_mov_b32 s33, 1
s_mov_b32 s32, 0.5
s_mov_b32 s31, 0x7ff00000
CF_notspecial:
s_mul_i32 s34, s25, 12288
s_mul_i32 s35, s25, 24576
s_lshl_b32 s36, s25, 13
s_add_u32 s37, s36, 53248            ; TW2
s_add_u32 s36, s36, 36864            ; TW1
""")
    def load_tab(reg, soff):
        for i in range(12):
            if i % 4 == 0: a(f"s_add_u32 s40, {soff}, {i*1024}")
            a(f"buffer_load_dwordx4 v[{reg+4*i}:{reg+4*i+3}], v3, s[8:11], s40 offen offset:{(i%4)*1024}")
    def load_tw(soff):
        for i in range(8):
            if i % 4 == 0: a(f"s_add_u32 s40, {soff}, {i*1024}")
            a(f"buffer_load_dwordx4 v[{CF_TW+4*i}:{CF_TW+4*i+3}], v3, s[8:11], s40 offen offset:{(i%4)*1024}")
    load_tab(CF_TA, "0")
    a.label("CF_pass")
    for part, so in ((0, 30), (1, 31)):
        for hl in range(2):
            for q in range(2):
                r = CF_D + part*16 + hl*8 + q*4
                a(f"buffer_load_dwordx4 v[{r}:{r+3}], v11, s[12:15], s{so} offen offset:{hl*1024+q*512}")
    load_tab(CF_TB, "s34")
    load_tw("s36")
    a(f"s_lshl_b32 s38, s29, 13\ns_lshl_b32 s39, s25, 12\ns_add_u32 s38, s38, s39\ns_add_u32 s38, s38, {WS_WT}")
    for v in range(16):
        a(f"buffer_load_dword v{CF_W+v}, v4, s[12:15], s38 offen offset:{v*256}")
    stamp(a)
    a("s_waitcnt vmcnt(24)")
    stamp(a)
    cf_stage(a, CF_TB, True, False)
    stamp(a)
    load_tab(CF_TB, "s35")
    a("s_waitcnt vmcnt(28)")
    cf_twiddle(a, False)
    load_tw("s37")
    cf_split(a)
    stamp(a)
    cf_stage(a, CF_TA, False, False)
    stamp(a)
    a("s_waitcnt vmcnt(20)")
    for v in range(16):
        xr, xi, w = CF_O+v, CF_O+16+v, CF_W+v
        t = CF_T + 4 * (v % 2)
        a(f"""v_lshlrev_b32 v{t}, 16, v{w}
v_and_b32 v{t+1}, 0xffff0000, v{w}
v_mul_f32 v{t}, s32, v{t}
v_mul_f32 v{t+1}, s32, v{t+1}
v_mul_f32 v{t+2}, v{xr}, v{t}
v_mul_f32 v{t+3}, v{xr}, v{t+1}
v_fma_f32 v{xr}, -v{xi}, v{t+1}, v{t+2}
v_fma_f32 v{xi}, v{xi}, v{t}, v{t+3}""")
    cf_split(a)
    cf_stage(a, CF_TA, True, True)
    a("s_waitcnt vmcnt(0)")
    cf_twiddle(a, True)
    cf_split(a)
    cf_stage(a, CF_TB, False, True)
    stamp(a)
    a("s_cmp_eq_u32 s33, 0\ns_cbranch_scc1 CF_out\ns_cmp_eq_u32 s33, 2\ns_cbranch_scc1 CF_sp2")
    for v in range(16): a(f"v_mov_b32 v{CF_SV+v}, v{CF_O+v}")
    a("s_mov_b32 s33, 2\ns_add_u32 s30, s30, 16\ns_mov_b32 s29, 288\ns_branch CF_pass")
    a.label("CF_sp2")
    for v in range(16): a(f"v_mov_b32 v{CF_O+16+v}, v{CF_O+v}\nv_mov_b32 v{CF_O+v}, v{CF_SV+v}")
    a.label("CF_out")
    a(f"""
v_and_b32 v5, 31, v2
v_mul_u32_u24 v5, {CF_LDS_STRIDE}, v5
v_lshrrev_b32 v6, 5, v2
v_lshl_add_u32 v5, v6, 6, v5         ; + h*4*16
s_lshl_b32 s38, s24, 2
v_add_u32 v5, s38, v5
""")
    for v in range(16):
        xr, xi = CF_O+v, CF_O+16+v
        t = CF_T + 4 * (v % 2)
        off = (((v // 4) % 2) * 16 + 8 * (v // 8) + v % 4) * 16
        a(f"""v_cvt_pk_bf16_f32 v{t}, v{xr}, v{xi}
v_lshlrev_b32 v{t+1}, 16, v{t}
v_and_b32 v{t+2}, 0xffff0000, v{t}
v_sub_f32 v{t+1}, v{xr}, v{t+1}
v_sub_f32 v{t+2}, v{xi}, v{t+2}
v_cvt_pk_bf16_f32 v{t+1}, v{t+1}, v{t+2}
ds_write_b32 v5, v{t} offset:{off}
ds_write_b32 v5, v{t+1} offset:{off+CF_LDS_HALF}""")
    a("s_waitcnt lgkmcnt(0)")
    stamp(a)
    a("s_barrier")
    a(f"""
v_lshrrev_b32 v6, 5, v2              ; lane/32
v_and_b32 v7, 31, v2                 ; chunk
v_mul_u32_u24 v8, {CF_LDS_STRIDE}, v6
v_lshl_add_u32 v8, v7, 4, v8
s_mul_i32 s38, s24, {8*CF_LDS_STRIDE}
v_add_u32 v8, s38, v8
v_lshrrev_b32 v9, 4, v2
v_mul_u32_u24 v9, {9*2048}, v9
v_and_b32 v10, 15, v2
v_lshl_add_u32 v9, v10, 4, v9
s_lshl_b32 s38, s25, 1
s_add_u32 s38, s38, s26
s_lshl_b32 s38, s38, 6
s_lshl_b32 s39, s24, 4
s_add_u32 s38, s38, s39
s_mul_i32 s38, s38, {9*2048}
s_lshr_b32 s39, s27, 2
s_lshl_b32 s39, s39, 11
s_add_u32 s38, s38, s39
s_and_b32 s39, s27, 3
s_lshl_b32 s39, s39, 8
s_add_u32 s38, s38, s39
s_add_u32 s38, s38, {WS_V}
""")
    for j in range(4):
        for hl in range(2):
            r = 16 + (j*2+hl)*4
            a(f"ds_read_b128 v[{r}:{r+3}], v8 offset:{j*2*CF_LDS_STRIDE + hl*CF_LDS_HALF}")
    for j in range(4):
        for hl in range(2):
            r = 16 + (j*2+hl)*4
            a(f"s_waitcnt lgkmcnt({7-(j*2+hl)})")
            a(f"buffer_store_dwordx4 v[{r}:{r+3}], v9, s[12:15], s38 offen offset:{hl*1024} sc1")
        if j < 3: a(f"s_add_u32 s38, s38, {4*9*2048}")
    stamp(a)
    stamp_flush(a, swg, 24, 0x8400000)
    a("s_endpgm")

def role_ri(a, swg, nks=8):
    a(f"""
s_load_dwordx2 s[6:7], s[0:1], {KA_WS}
s_load_dwordx2 s[16:17], s[0:1], {KA_X}
s_load_dwordx2 s[18:19], s[0:1], {KA_OUT}
s_load_dwordx2 s[44:45], s[0:1], {KA_B2}
v_lshrrev_b32 v1, 6, v0
v_and_b32 v2, 63, v0
v_readfirstlane_b32 s24, v1          ; wave
s_and_b32 s25, s{swg}, 63            ; rt
s_lshr_b32 s26, s{swg}, 6            ; ng
s_mul_i32 s27, s26, 6
s_add_u32 s27, s27, s24              ; nt
""")
    table_srd(a, 8, "tab_ti", 18*36*1024, 4)
    a("s_waitcnt lgkmcnt(0)")
    srd(a, 12, 6, WS_BYTES)
    srd(a, 20, 16, S*D*2)
    srd(a, 48, 18, S*D*2)
    srd(a, 52, 44, D*2)
    a(f"""
v_lshlrev_b32 v3, 4, v2
s_mul_i32 s28, s25, {18*1024}
s_add_u32 s28, s28, {WS_V}
s_mul_i32 s30, s27, {36*1024}
""")
    a("s_mul_i32 s29, s24, 12")
    for i in range(12):
        a(f"""s_add_u32 s31, s29, {i}
s_mul_i32 s32, s31, 3641
s_lshr_b32 s32, s32, 16              ; blk
s_mul_i32 s33, s32, {64*18*1024 - 18*1024}
s_lshl_b32 s34, s31, 10
s_mov_b32 m0, s34
s_add_u32 s33, s33, s34
s_add_u32 s33, s33, s28
buffer_load_dwordx4 v3, s[12:15], s33 offen lds""")
    TB = 64
    for i in range(36):
        if i % 4 == 0: a(f"s_add_u32 s31, s30, {i*1024}")
        a(f"buffer_load_dwordx4 v[{TB+4*i}:{TB+4*i+3}], v3, s[8:11], s31 offen offset:{(i%4)*1024}")
    a("s_waitcnt vmcnt(36)\ns_barrier")
    AC = 16
    BF = 208
    a(f"v_add_u32 v4, {36*1024}, v3")
    steps = [(par, s) for par in range(2) for s in range(9)]
    def vread(idx):
        par, s = steps[idx]
        for pi in range(2):
            for hl in range(2):
                r = BF + (idx % 2) * 16 + (pi*2+hl) * 4
                off = ((pi*2+par) * 18 + s*2 + hl) * 1024
                if off >= 36*1024: a(f"ds_read_b128 v[{r}:{r+3}], v4 offset:{off-36*1024}")
                else: a(f"ds_read_b128 v[{r}:{r+3}], v3 offset:{off}")
    vread(0)
    for idx, (par, s) in enumerate(steps):
        if idx + 1 < 18:
            vread(idx + 1)
            a(f"s_waitcnt lgkmcnt(4) vmcnt({34 - 2*idx})")
        else:
            a("s_waitcnt lgkmcnt(0) vmcnt(0)")
        th = TB + idx * 8; tl = th + 4
        for (tt, bh) in ((th, 0), (th, 1), (tl, 0)):
            for pi in range(2):
                r = BF + (idx % 2) * 16 + (pi*2+bh) * 4
                d = AC + (pi*2+par) * 4
                c = "0" if (s == 0 and tt == th and bh == 0) else f"v[{d}:{d+3}]"
                a(f"v_mfma_f32_16x16x32_bf16 v[{d}:{d+3}], v[{tt}:{tt+3}], v[{r}:{r+3}], {c}")
    PB = 64
    a(f"""
s_cmp_ge_u32 s27, 9
s_cselect_b32 s36, 1, 0              ; nt/9
s_mul_i32 s37, s36, 9
s_sub_u32 s37, s27, s37              ; n9
s_mul_i32 s31, s25, {36*512}
s_mul_i32 s36, s36, 4608
s_add_u32 s31, s31, s36
s_lshr_b32 s36, s37, 1
s_lshl_b32 s36, s36, 10
s_add_u32 s31, s31, s36
s_and_b32 s36, s37, 1
s_lshl_b32 s36, s36, 3
s_add_u32 s31, s31, s36
s_add_u32 s31, s31, {WS_P}
s_cmp_eq_u32 s37, 8
s_cselect_b32 s36, 3, 4
v_lshlrev_b32 v5, s36, v2
""")
    for o in range(4):
        rho, eta = divmod(o, 2)
        for ks in range(nks):
            r = PB + (o * nks + ks) * 2
            a(f"s_add_u32 s32, s31, {(ks*128 + rho*64)*36*512 + 2*4608*eta}")
            a(f"buffer_load_dwordx2 v[{r}:{r+1}], v5, s[12:15], s32 offen")
    XB = PB + 4 * nks * 2
    a(f"""
v_and_b32 v6, 15, v2
v_lshrrev_b32 v7, 3, v6
v_lshlrev_b32 v7, 4, v7
v_and_b32 v6, 7, v6
v_add_u32 v6, v6, v7
s_and_b32 s32, s25, 1
s_lshl_b32 s32, s32, 3
v_add_u32 v6, s32, v6
v_mul_u32_u24 v6, {32*1152}, v6
v_lshrrev_b32 v7, 4, v2
v_lshlrev_b32 v7, 3, v7
v_add_u32 v6, v6, v7
s_lshr_b32 s32, s25, 1
s_mul_i32 s32, s32, 1152
s_lshl_b32 s33, s27, 5
s_add_u32 s32, s32, s33
s_add_u32 s34, s32, {1024*1152}
""")
    for o in range(4):
        rho, eta = divmod(o, 2)
        a(f"buffer_load_dwordx2 v[{XB+2*o}:{XB+2*o+1}], v6, s[20:23], s{34 if rho else 32} offen offset:{576*eta}")
    BB = XB + 8
    for eta in range(2):
        a(f"buffer_load_dwordx2 v[{BB+2*eta}:{BB+2*eta+1}], v7, s[52:55], s33 offen offset:{576*eta}")
    a("s_nop 3")
    for v in range(4):
        E0, O0, E1, O1 = AC+v, AC+4+v, AC+8+v, AC+12+v
        a(f"""v_add_f32 v48, v{E0}, v{O0}
v_sub_f32 v49, v{E0}, v{O0}
v_add_f32 v50, v{E1}, v{O1}
v_sub_f32 v51, v{E1}, v{O1}
v_add_f32 v{32+v}, v48, v50
v_add_f32 v{36+v}, v49, v51
v_sub_f32 v{40+v}, v48, v50
v_sub_f32 v{44+v}, v49, v51""")
    a(f"s_mov_b32 s35, {f32hex(-np.log2(np.e))}")
    a("s_waitcnt vmcnt(0)")
    T = 8
    for o in range(4):
        rho, eta = divmod(o, 2)
        for ks in range(nks):
            r = PB + (o * nks + ks) * 2
            if ks == 0:
                a(f"v_lshlrev_b32 v48, 16, v{r}\nv_and_b32 v49, 0xffff0000, v{r}\nv_lshlrev_b32 v50, 16, v{r+1}\nv_and_b32 v51, 0xffff0000, v{r+1}")
            else:
                a(f"v_lshlrev_b32 v52, 16, v{r}\nv_and_b32 v53, 0xffff0000, v{r}\nv_lshlrev_b32 v54, 16, v{r+1}\nv_and_b32 v55, 0xffff0000, v{r+1}")
                for v in range(4): a(f"v_add_f32 v{48+v}, v{48+v}, v{52+v}")
        def rnd4(b):
            a(f"v_cvt_pk_bf16_f32 v{T}, v{b}, v{b+1}\nv_cvt_pk_bf16_f32 v{T+1}, v{b+2}, v{b+3}")
            a(f"v_lshlrev_b32 v{b}, 16, v{T}\nv_and_b32 v{b+1}, 0xffff0000, v{T}\nv_lshlrev_b32 v{b+2}, 16, v{T+1}\nv_and_b32 v{b+3}, 0xffff0000, v{T+1}")
        def unp4(d, r):
            a(f"v_lshlrev_b32 v{d}, 16, v{r}\nv_and_b32 v{d+1}, 0xffff0000, v{r}\nv_lshlrev_b32 v{d+2}, 16, v{r+1}\nv_and_b32 v{d+3}, 0xffff0000, v{r+1}")
        rnd4(48)
        unp4(52, BB + 2*eta)
        for v in range(4): a(f"v_add_f32 v{48+v}, v{48+v}, v{52+v}")
        rnd4(48)
        for v in range(4): a(f"v_mul_f32 v{52+v}, s35, v{48+v}")
        for v in range(4): a(f"v_exp_f32 v{52+v}, v{52+v}")
        for v in range(4): a(f"v_add_f32 v{52+v}, 1.0, v{52+v}")
        for v in range(4): a(f"v_rcp_f32 v{52+v}, v{52+v}")
        for v in range(4): a(f"v_mul_f32 v{48+v}, v{48+v}, v{52+v}")
        rnd4(48)
        rnd4(32 + 4*o)
        for v in range(4): a(f"v_mul_f32 v{48+v}, v{48+v}, v{32+4*o+v}")
        rnd4(48)
        unp4(52, XB + 2*o)
        for v in range(4): a(f"v_add_f32 v{48+v}, v{48+v}, v{52+v}")
        a(f"v_cvt_pk_bf16_f32 v{56+2*o}, v48, v49\nv_cvt_pk_bf16_f32 v{57+2*o}, v50, v51")
        a(f"buffer_store_dwordx2 v[{56+2*o}:{57+2*o}], v6, s[48:51], s{34 if rho else 32} offen offset:{576*eta}")
    a("s_endpgm")
```

```python
from asmlib import *
from roles1 import *

class Cnt:
    def __init__(self, a, name, maxv):
        self.a, self.name, self.maxv = a, name, maxv
        self.issued = 0
        self.done = 0
    def issue(self):
        self.issued += 1
        return self.issued - 1
    def need(self, idx):
        if idx < self.done: return None
        n = self.issued - idx - 1
        self.done = idx + 1
        return min(n, self.maxv)
    def wait(self, idx):
        n = self.need(idx)
        if n is not None:
            self.a(f"s_waitcnt {self.name}({n})")
    def wait_all(self):
        if self.done < self.issued:
            self.a(f"s_waitcnt {self.name}(0)")
            self.done = self.issued

SLAB = 9216
STAMPS = False
WARM = False
VARIANT = 'A'
STAMP_S0 = 60
_stamp_n = [0]
def stamp(a):
    if not STAMPS: return
    i = _stamp_n[0]; _stamp_n[0] += 1
    a(f"s_memtime s[{STAMP_S0+2*i}:{STAMP_S0+2*i+1}]")
    if i == 0: a("s_memrealtime s[92:93]")
def stamp_flush(a, swg, swave, base, srdws=12):
    if not STAMPS: return
    n = _stamp_n[0]; _stamp_n[0] = 0
    a("s_waitcnt lgkmcnt(0) vmcnt(0)")
    a(f"s_memtime s[{STAMP_S0+2*n}:{STAMP_S0+2*n+1}]")
    a("s_memrealtime s[94:95]")
    a("s_waitcnt lgkmcnt(0)")
    n += 1
    a(f"s_lshl_b32 s58, s{swg}, 2")
    a(f"s_add_u32 s58, s58, s{swave}")
    a(f"s_lshl_b32 s58, s58, 6")
    a(f"s_add_u32 s58, s58, {base}")
    a("v_mov_b32 v1, 0")
    for (sreg, off) in [(92, 56), (94, 60)] + [(STAMP_S0+2*i, 4*i) for i in range(n)]:
        a(f"v_mov_b32 v0, s{sreg}")
        a(f"buffer_store_dword v0, v1, s[{srdws}:{srdws+3}], s58 offen offset:{off}")
GELU_C0 = -2.0 * np.sqrt(2.0 / np.pi) * np.log2(np.e)
GELU_C1 = GELU_C0 * 0.044715

ACC = 0
ACT = 144
AFR = 208
VA  = 232
VD  = 236
VL  = 245
VT  = 247
PD, LA = 3, 5
RA = LA + 1

def acc(mt, nt): return ACC + (mt * 9 + nt) * 4

def gemm_core(a, cfg):
    NS = 18
    vm = Cnt(a, "vmcnt", 63); lg = Cnt(a, "lgkmcnt", 15)
    vm.issued = cfg.get("pre_vm", 0)
    st = cfg["stmp"]
    dma_last = {}
    def dma_list(stage):
        out = []
        for i in range(9):
            def f(i=i):
                if i == 0:
                    a(f"s_add_u32 s{st}, s{cfg['s_wslab']}, {stage * cfg['w_stage_stride']}")
                a(f"s_add_u32 m0, s{cfg['s_m0']}, {(stage % 2) * 4 * SLAB + i * 1024}")
                a("s_nop 0")
                a(f"buffer_load_dwordx4 v{VD+i}, s[{cfg['w_srd']}:{cfg['w_srd']+3}], s{st} offen lds")
                dma_last[stage] = vm.issue()
            out.append(f)
        return out
    act_last = {}
    def act_load(s):
        so, imm = cfg["act_step"](s)
        for mt in range(4):
            r = ACT + (s % (PD + 1)) * 16 + mt * 4
            a(f"buffer_load_dwordx4 v[{r}:{r+3}], v{VA+mt}, s[{cfg['act_srd']}:{cfg['act_srd']+3}], {so} offen offset:{imm}")
            act_last[s] = vm.issue()
    tr_last = {}
    def tr_read(t):
        s, nt = divmod(t, 9)
        stage, j = divmod(s, 4)
        r = AFR + (t % RA) * 4
        off = j * SLAB + nt * 32
        a(f"ds_read_b64_tr_b16 v[{r}:{r+1}], v{VL + stage % 2} offset:{off}")
        lg.issue()
        a(f"ds_read_b64_tr_b16 v[{r+2}:{r+3}], v{VL + stage % 2} offset:{off + cfg['tr2']}")
        tr_last[t] = lg.issue()
    if cfg.get("warm"):
        for stage in range(5):
            for f in dma_list(stage): f()
            a("s_waitcnt vmcnt(0)")
        for s_ in range(NS):
            act_load(s_)
            if s_ % 4 == 3: a("s_waitcnt vmcnt(0)")
        a("s_waitcnt vmcnt(0)\ns_barrier\ns_sleep 100\ns_sleep 100\ns_sleep 100\ns_sleep 100")
        vm.done = vm.issued
        _stamp_n[0] = 0
        stamp(a)
    for f in dma_list(0): f()
    act_load(0)
    for f in dma_list(1): f()
    for s in range(1, PD): act_load(s)
    if "prologue_extra" in cfg: cfg["prologue_extra"](vm)
    stamp(a)
    vm.wait(dma_last[0])
    a("s_barrier")
    stamp(a)
    NT = NS * 9
    next_read = 0
    avail_stage = 0
    pending_dma = []
    def pump_reads(upto):
        nonlocal next_read
        while next_read <= upto and next_read < NT and (next_read // 36) <= avail_stage:
            tr_read(next_read); next_read += 1
    pump_reads(LA - 1)
    for t in range(NT):
        s, nt = divmod(t, 9)
        if nt == 0:
            vm.wait(act_last[s])
            if s + PD < NS: act_load(s + PD)
        lg.wait(tr_last[t])
        ra = AFR + (t % RA) * 4
        for mt in range(4):
            rb = ACT + (s % (PD + 1)) * 16 + mt * 4
            d = acc(mt, nt)
            c = cfg["first_c"](mt, nt) if s == 0 else f"v[{d}:{d+3}]"
            a(f"v_mfma_f32_16x16x32_bf16 v[{d}:{d+3}], v[{ra}:{ra+3}], v[{rb}:{rb+3}], {c}")
            if mt == 1 and pending_dma:
                pending_dma.pop(0)()
        stage = t // 36
        if t == 36 * (stage + 1) - LA + 1 and 36 * (stage + 1) < NT:
            n = vm.need(dma_last[stage + 1])
            lg.done = lg.issued
            a(f"s_waitcnt lgkmcnt(0)" + (f" vmcnt({n})" if n is not None else ""))
            a("s_barrier")
            stamp(a)
            avail_stage = stage + 1
            if (stage + 2) * 4 < NS:
                pending_dma = dma_list(stage + 2)
        pump_reads(t + LA)
    a("s_nop 7\ns_nop 3")
    stamp(a)
    return vm

def prow_tables(kind):
    out = []
    for p in range(576):
        prow, o = divmod(p, 18)
        if kind == "nat":
            hi, r16 = divmod(prow, 16)
            inv = {0:0,1:1,2:2,3:3,4:8,5:9,6:10,7:11,8:4,9:5,10:6,11:7,12:12,13:13,14:14,15:15}[r16]
            row = hi * 16 + inv
        else:
            row = prow
        out.append((row, o))
    return out

def setup_dma_offsets(a, vlane, ldw, kind, t0, t1, t2):
    for i in range(9):
        a(f"v_add_u32 v{t0}, {64*i}, v{vlane}")
        a(f"v_mul_u32_u24 v{t1}, 3641, v{t0}\nv_lshrrev_b32 v{t1}, 16, v{t1}")
        a(f"v_mul_u32_u24 v{t2}, 18, v{t1}\nv_sub_u32 v{t0}, v{t0}, v{t2}")
        if kind == "nat":
            a(f"v_lshrrev_b32 v{t2}, 1, v{t1}\nv_xor_b32 v{t2}, v{t2}, v{t1}\nv_and_b32 v{t2}, 4, v{t2}")
            a(f"v_mul_u32_u24 v{t2}, 3, v{t2}\nv_xor_b32 v{t1}, v{t1}, v{t2}")
        a(f"v_mul_u32_u24 v{t1}, {ldw}, v{t1}")
        a(f"v_lshl_add_u32 v{VD+i}, v{t0}, 4, v{t1}")
for p in range(576): assert (p * 3641) >> 16 == p // 18

def setup_lds_read(a, vlane, kind, t0, t1):
    a(f"v_lshrrev_b32 v{t0}, 2, v{vlane}")
    if kind == "nat":
        a(f"v_and_b32 v{t1}, 8, v{t0}\nv_add_u32 v{t0}, v{t0}, v{t1}")
    a(f"v_mul_u32_u24 v{t0}, 288, v{t0}")
    a(f"v_and_b32 v{t1}, 3, v{vlane}\nv_lshl_add_u32 v{VL}, v{t1}, 3, v{t0}")
    a(f"v_add_u32 v{VL+1}, {4*SLAB}, v{VL}")

def gelu4(a, r, t, vc0, sc1):
    for j in range(4): a(f"v_mul_f32 v{t+j}, v{r+j}, v{r+j}")
    for j in range(4): a(f"v_fma_f32 v{t+j}, v{t+j}, s{sc1}, v{vc0}")
    for j in range(4): a(f"v_mul_f32 v{t+j}, v{t+j}, v{r+j}")
    for j in range(4): a(f"v_exp_f32 v{t+j}, v{t+j}")
    for j in range(4): a(f"v_add_f32 v{t+j}, 1.0, v{t+j}")
    for j in range(4): a(f"v_rcp_f32 v{t+j}, v{t+j}")
    for j in range(4): a(f"v_mul_f32 v{r+j}, v{r+j}, v{t+j}")

def role_g1(a, swg, act_base=WS_Y):
    stamp(a)
    a(f"""
s_load_dwordx2 s[4:5], s[0:1], {KA_W1}
s_load_dwordx2 s[6:7], s[0:1], {KA_WS}
s_load_dwordx2 s[16:17], s[0:1], {KA_B1}
v_mov_b32 v{VT+8}, v0
v_lshrrev_b32 v{VT}, 6, v0
v_and_b32 v{VT+7}, 63, v0            ; lane
v_readfirstlane_b32 s24, v{VT}       ; wave
s_and_b32 s25, s{swg}, 7             ; xcd
s_lshr_b32 s26, s{swg}, 3            ; j
s_and_b32 s27, s25, 1
s_lshl_b32 s27, s27, 2
s_and_b32 s28, s26, 3
s_add_u32 s27, s27, s28              ; Mt
s_lshr_b32 s28, s25, 1
s_lshl_b32 s28, s28, 3
s_lshr_b32 s29, s26, 2
s_add_u32 s28, s28, s29              ; Nt
s_waitcnt lgkmcnt(0)
""")
    srd(a, 8, 4, D*F*2)
    srd(a, 12, 6, WS_BYTES)
    srd(a, 20, 16, F*2)
    L = VT + 7
    setup_dma_offsets(a, L, 1152 if 'B' in VARIANT else 9216, "nat", VT, VT+1, VT+2)
    setup_lds_read(a, L, "nat", VT, VT+1)
    a(f"""
s_lshl_b32 s30, s27, 2
s_add_u32 s30, s30, s24
s_mul_i32 s31, s30, {64*1152}
s_add_u32 s31, s31, {act_base}
v_and_b32 v{VT}, 15, v{L}
v_mul_u32_u24 v{VT}, 1152, v{VT}
v_lshrrev_b32 v{VT+1}, 4, v{L}
v_lshl_add_u32 v{VT}, v{VT+1}, 4, v{VT}
v_add_u32 v{VA}, s31, v{VT}
v_add_u32 v{VA+1}, {16*1152}, v{VA}
v_add_u32 v{VA+2}, {32*1152}, v{VA}
v_add_u32 v{VA+3}, {48*1152}, v{VA}
s_mul_i32 s32, s28, 288              ; n0*2 bytes
s_mul_i32 s33, s24, {32*(1152 if 'B' in VARIANT else 9216)}
s_add_u32 s33, s33, s32              ; s_wslab
s_mul_i32 s34, s24, {SLAB}           ; s_m0
v_lshlrev_b32 v{VT+2}, 3, v{VT+1}
""")
    if 'A' in VARIANT:
        a(f"""
s_mul_i32 s31, s30, {4*18*1024}
s_add_u32 s31, s31, {act_base}
v_lshlrev_b32 v{VT}, 4, v{L}
v_add_u32 v{VA}, s31, v{VT}
v_add_u32 v{VA+1}, {18*1024}, v{VA}
v_add_u32 v{VA+2}, {2*18*1024}, v{VA}
v_add_u32 v{VA+3}, {3*18*1024}, v{VA}
s_mov_b32 s41, 4096
s_mov_b32 s42, 8192
s_mov_b32 s43, 12288
s_mov_b32 s44, 16384
""")
    bias_ids = []
    def pro(vm):
        for nt in range(9):
            r = acc(2, nt)
            a(f"buffer_load_dwordx2 v[{r}:{r+1}], v{VT+2}, s[20:23], s32 offen offset:{nt*32}")
            bias_ids.append(vm.issue())
        vm.wait(bias_ids[-1])
        for nt in range(9):
            r = acc(2, nt); d = acc(3, nt)
            a(f"v_lshlrev_b32 v{d}, 16, v{r}\nv_and_b32 v{d+1}, 0xffff0000, v{r}\nv_lshlrev_b32 v{d+2}, 16, v{r+1}\nv_and_b32 v{d+3}, 0xffff0000, v{r+1}")
    def act_stepA(s):
        q, r = divmod(s, 4)
        return (0 if q == 0 else f"s{40+q}", r * 1024)
    LDW = 1152 if 'B' in VARIANT else 9216
    cfg = dict(act_srd=12, act_step=(act_stepA if 'A' in VARIANT else lambda s: (0, s*64)), w_srd=8, s_wslab=33, w_stage_stride=128*LDW,
               tr2=8*288, first_c=lambda mt, nt: f"v[{acc(3,nt)}:{acc(3,nt)+3}]", s_m0=34, stmp=35, prologue_extra=pro, warm=WARM)
    gemm_core(a, cfg)
    a(f"""
v_mov_b32 v{VT}, {f32hex(GELU_C0)}
s_mov_b32 s36, {f32hex(GELU_C1)}
v_lshlrev_b32 v{VT+1}, 4, v{L}       ; lane*16
s_mul_i32 s37, s30, {4*147456}
s_add_u32 s37, s37, {WS_H}
s_mul_i32 s38, s28, 9                ; T0
""")
    for nt in range(9):
        a(f"""
s_add_u32 s39, s38, {nt}
s_lshr_b32 s40, s39, 1
s_lshl_b32 s40, s40, 10
s_and_b32 s39, s39, 1
s_lshl_b32 s39, s39, 3
s_add_u32 s40, s40, s39
s_add_u32 s40, s40, s37
""")
        for mt in range(4):
            r = acc(mt, nt); t = ACT + ((nt*4+mt) % 8) * 8
            gelu4(a, r, t, VT, 36)
            a(f"v_cvt_pk_bf16_f32 v{t+4}, v{r}, v{r+1}\nv_cvt_pk_bf16_f32 v{t+5}, v{r+2}, v{r+3}")
            a(f"buffer_store_dwordx2 v[{t+4}:{t+5}], v{VT+1}, s[12:15], s40 offen")
            if mt < 3: a(f"s_add_u32 s40, s40, 147456")
    stamp(a)
    stamp_flush(a, swg, 24, 0x8000000)
    a("s_endpgm")

def role_g2(a, swg):
    stamp(a)
    a(f"""
s_load_dwordx2 s[4:5], s[0:1], {KA_W2}
s_load_dwordx2 s[6:7], s[0:1], {KA_WS}
v_lshrrev_b32 v{VT}, 6, v0
v_and_b32 v{VT+7}, 63, v0            ; lane
v_readfirstlane_b32 s24, v{VT}       ; wave
s_and_b32 s25, s{swg}, 7             ; ks
s_lshr_b32 s26, s{swg}, 3
s_and_b32 s27, s26, 7                ; Mt
s_lshr_b32 s28, s26, 3               ; Nt
s_waitcnt lgkmcnt(0)
""")
    srd(a, 8, 4, D*F*2)
    srd(a, 12, 6, WS_BYTES)
    a(f"s_add_u32 s29, s25, 1\ns_mul_i32 s10, s29, {576*1152}")
    L = VT + 7
    setup_dma_offsets(a, L, 1152, "perm", VT, VT+1, VT+2)
    setup_lds_read(a, L, "perm", VT, VT+1)
    a(f"""
s_lshl_b32 s30, s27, 2
s_add_u32 s30, s30, s24
s_mul_i32 s31, s30, {4*147456}
s_mul_i32 s29, s25, {18*1024}
s_add_u32 s31, s31, s29
s_add_u32 s31, s31, {WS_H}
v_lshlrev_b32 v{VT}, 4, v{L}
v_add_u32 v{VA}, s31, v{VT}
v_add_u32 v{VA+1}, 147456, v{VA}
v_add_u32 v{VA+2}, {2*147456}, v{VA}
v_add_u32 v{VA+3}, {3*147456}, v{VA}
s_mul_i32 s32, s28, 288              ; n0*2
s_mul_i32 s33, s24, {32*1152}
s_add_u32 s33, s33, s32
s_mul_i32 s29, s25, {576*1152}
s_add_u32 s33, s33, s29              ; s_wslab
s_mul_i32 s34, s24, {SLAB}
s_mov_b32 s41, 4096
s_mov_b32 s42, 8192
s_mov_b32 s43, 12288
s_mov_b32 s44, 16384
""")
    def act_step(s):
        q, r = divmod(s, 4)
        return (0 if q == 0 else f"s{40+q}", r * 1024)
    cfg = dict(act_srd=12, act_step=act_step, w_srd=8, s_wslab=33, w_stage_stride=128*1152,
               tr2=16*288, first_c=lambda mt, nt: "0", s_m0=34, stmp=35, warm=WARM)
    gemm_core(a, cfg)
    a(f"""
v_lshlrev_b32 v{VT+1}, 3, v{L}       ; lane*8
s_lshl_b32 s37, s25, 7               ; ks*128
s_lshl_b32 s38, s30, 2
s_add_u32 s37, s37, s38              ; + mtile0
s_mul_i32 s37, s37, {36*512}
s_mul_i32 s38, s28, {9*512}
s_add_u32 s37, s37, s38
s_add_u32 s37, s37, {WS_P}
""")
    for mt in range(4):
        for nt in range(9):
            r = acc(mt, nt); t = ACT + ((nt*4+mt) % 16) * 2
            a(f"v_cvt_pk_bf16_f32 v{t}, v{r}, v{r+1}\nv_cvt_pk_bf16_f32 v{t+1}, v{r+2}, v{r+3}")
            off = nt * 512
            if off >= 4096:
                a(f"s_add_u32 s38, s37, 4096")
                a(f"buffer_store_dwordx2 v[{t}:{t+1}], v{VT+1}, s[12:15], s38 offen offset:{off-4096}")
            else:
                a(f"buffer_store_dwordx2 v[{t}:{t+1}], v{VT+1}, s[12:15], s37 offen offset:{off}")
        if mt < 3: a(f"s_add_u32 s37, s37, {36*512}")
    stamp(a)
    stamp_flush(a, swg, 24, 0x8100000)
    a("s_endpgm")
```

```python
from asmlib import *
from roles1 import *
import gemm
from gemm import Cnt, stamp, stamp_flush, GELU_C0, GELU_C1, gelu4

SLAB = 9216
STG = 2 * SLAB
ST_FLAG = " sc1"

class G:
    def __init__(s, NW=4, MT=4, PD=4, LA=4, NRING=4, second=False):
        s.NW, s.MT, s.PD, s.LA, s.NRING = NW, MT, PD, LA, NRING
        s.RA = LA + 1
        s.ACC = 0
        s.ACT = MT * 36
        s.AFR = s.ACT + (PD + 1) * MT * 4
        s.VA = s.AFR + s.RA * 4
        s.ND = -(-18 // NW)
        s.NOPT = 18 - NW * (s.ND - 1)
        s.VD = s.VA + 1
        s.VL = s.VD + s.ND
        s.VT = s.VL + 2
        s.NREG = s.VT + 2
        s.LDS = NRING * STG
    def acc(s, mt, nt): return s.ACC + (mt * 9 + nt) * 4

def gemm_core(a, g, cfg):
    NS = 18; NSTG = 9; NT = NS * 9
    PD, LA, RA, MT, NR = g.PD, g.LA, g.RA, g.MT, g.NRING
    vm = Cnt(a, "vmcnt", 63); lg = Cnt(a, "lgkmcnt", 15)
    wsrd = cfg["w_srd"]
    dma_last = {}; act_last = {}; tr_last = {}; act_cnt = {}; dma_done = set()
    def dma_ops(st):
        out = []
        slot = st % NR
        order = [g.ND - 1] + list(range(g.ND - 1))
        for j in order:
            def f(j=j):
                opt = (j == g.ND - 1) and g.NOPT < g.NW
                if j == order[0]:
                    if "pre_dma" in cfg: cfg["pre_dma"](st)
                    a(f"s_add_u32 s{cfg['s_w']}, s{cfg['s_wbase']}, {cfg['w_off'](st)}")
                if opt:
                    lab = a.uid("dsk")
                    a(f"s_cmp_ge_u32 s{cfg['s_wave']}, {g.NOPT}\ns_cbranch_scc1 {lab}")
                a(f"s_add_u32 m0, s{cfg['s_m0']}, {slot * STG + j * g.NW * 1024}")
                a("s_nop 0")
                a(f"buffer_load_dwordx4 v{g.VD+j}, s[{wsrd}:{wsrd+3}], s{cfg['s_w']} offen lds")
                if opt: a.label(lab)
                else: dma_last[st] = vm.issue()
                if j == order[-1]: dma_done.add(st)
            out.append(f)
        return out
    def act_ops(s):
        out = []
        for mt in range(MT):
            def f(mt=mt):
                r = g.ACT + ((s % (PD + 1)) * MT + mt) * 4
                act_last[s] = cfg["act"](a, s, mt, r, vm)
                act_cnt[s] = act_cnt.get(s, 0) + 1
            out.append(f)
        return out
    def tr_read(t):
        s, nt = divmod(t, 9)
        st, j = divmod(s, 2)
        slot = st % NR
        r = g.AFR + (t % RA) * 4
        off = (slot % 2) * STG + j * SLAB + nt * 32
        vl = g.VL + slot // 2
        a(f"ds_read_b64_tr_b16 v[{r}:{r+1}], v{vl} offset:{off}")
        lg.issue()
        a(f"ds_read_b64_tr_b16 v[{r+2}:{r+3}], v{vl} offset:{off + cfg['tr2']}")
        tr_last[t] = lg.issue()
    for f in dma_ops(0): f()
    if "pre_act" in cfg: cfg["pre_act"](vm)
    if "wait_hook" in cfg:
        for st_ in range(1, NR):
            for f in dma_ops(st_): f()
        cfg["wait_hook"](vm)
        for s in range(0, 3):
            for f in act_ops(s): f()
        queue = []
        for s in range(3, PD + 1): queue += act_ops(s)
    else:
        for f in act_ops(0): f()
        for f in act_ops(1): f()
        for f in dma_ops(1): f()
        queue = act_ops(2) + dma_ops(2) + act_ops(3) + dma_ops(3)
        for s in range(4, PD + 1): queue += act_ops(s)
    next_act = max(PD + 1, 4)
    if "prologue_extra" in cfg: cfg["prologue_extra"](vm)
    stamp(a)
    vm.wait(dma_last[0])
    a("s_barrier")
    stamp(a)
    next_read = 0; avail = 0
    def pump_reads(upto):
        nonlocal next_read
        while next_read <= upto and next_read < NT and (next_read // 18) <= avail:
            tr_read(next_read); next_read += 1
    pump_reads(LA - 1)
    for t in range(NT):
        s, nt = divmod(t, 9)
        if nt == 0:
            if s >= 1 and next_act < NS:
                queue += act_ops(next_act); next_act += 1
            while act_cnt.get(s, 0) < MT: queue.pop(0)()
            vm.wait(act_last[s])
        lg.wait(tr_last[t])
        ra = g.AFR + (t % RA) * 4
        for mt in range(MT):
            rb = g.ACT + ((s % (PD + 1)) * MT + mt) * 4
            d = g.acc(mt, nt)
            c = cfg["first_c"](mt, nt) if s == 0 else f"v[{d}:{d+3}]"
            a(f"v_mfma_f32_16x16x32_bf16 v[{d}:{d+3}], v[{ra}:{ra+3}], v[{rb}:{rb+3}], {c}")
            if mt == max(MT // 2 - 1, 0) and queue: queue.pop(0)()
            if mt == MT - 1 and len(queue) > 6: queue.pop(0)()
        st = t // 18
        if t == 18 * (st + 1) - LA + 1 and st + 1 < NSTG:
            while (st + 1) not in dma_done: queue.pop(0)()
            n = vm.need(dma_last[st + 1])
            lg.done = lg.issued
            a("s_waitcnt lgkmcnt(0)" + (f" vmcnt({n})" if n is not None else ""))
            a("s_barrier")
            if st % 2 == 1: stamp(a)
            avail = st + 1
            if st + NR < NSTG: queue += dma_ops(st + NR)
        pump_reads(t + LA)
    assert not queue
    a("s_nop 7\ns_nop 3")
    stamp(a)
    return vm

def setup_dma(a, g, vlane, swave, ldw, kind, t0, t1, t2, s_m0, stmp):
    a(f"s_lshl_b32 s{stmp}, s{swave}, 6")
    for j in range(g.ND):
        a(f"v_add_u32 v{t0}, s{stmp}, v{vlane}")
        if j: a(f"v_add_u32 v{t0}, {64*g.NW*j}, v{t0}")
        a(f"v_mul_u32_u24 v{t1}, 3641, v{t0}\nv_lshrrev_b32 v{t1}, 16, v{t1}")
        a(f"v_mul_u32_u24 v{t2}, 18, v{t1}\nv_sub_u32 v{t0}, v{t0}, v{t2}")
        if kind == "nat":
            a(f"v_lshrrev_b32 v{t2}, 1, v{t1}\nv_xor_b32 v{t2}, v{t2}, v{t1}\nv_and_b32 v{t2}, 4, v{t2}")
            a(f"v_mul_u32_u24 v{t2}, 3, v{t2}\nv_xor_b32 v{t1}, v{t1}, v{t2}")
        a(f"v_mul_u32_u24 v{t1}, {ldw}, v{t1}")
        a(f"v_lshl_add_u32 v{g.VD+j}, v{t0}, 4, v{t1}")
    a(f"s_lshl_b32 s{s_m0}, s{swave}, 10")

def setup_lds_read(a, g, vlane, kind, t0, t1):
    a(f"v_lshrrev_b32 v{t0}, 2, v{vlane}")
    if kind == "nat":
        a(f"v_and_b32 v{t1}, 8, v{t0}\nv_add_u32 v{t0}, v{t0}, v{t1}")
    a(f"v_mul_u32_u24 v{t0}, 288, v{t0}")
    a(f"v_and_b32 v{t1}, 3, v{vlane}\nv_lshl_add_u32 v{g.VL}, v{t1}, 3, v{t0}")
    a(f"v_add_u32 v{g.VL+1}, {2*STG}, v{g.VL}")

def store_tilegroups(a, g, mt, sbase, s2, v8, conv, k0, nbuf, tsz):
    k = k0
    for gi in range(5):
        t = g.ACT + (k % nbuf) * tsz; k += 1
        o = t + tsz - 4
        for x in range(2 if gi < 4 else 1):
            r = g.acc(mt, 2*gi + x)
            conv(r, t)
            a(f"v_cvt_pk_bf16_f32 v{o+2*x}, v{r}, v{r+1}\nv_cvt_pk_bf16_f32 v{o+2*x+1}, v{r+2}, v{r+3}")
        if gi < 4: a(f"buffer_store_dwordx4 v[{o}:{o+3}], v{g.VA}, s[12:15], s{sbase} offen offset:{gi*1024}{ST_FLAG}")
        else: a(f"buffer_store_dwordx2 v[{o}:{o+1}], v{v8}, s[12:15], s{s2} offen{ST_FLAG}")
    return k

def role_g1(a, swg, g, prio=None, epi_hook=None, wait_hook=None, vtid=0):
    stamp(a)
    MT = g.MT
    L, T0, T1, T2 = g.VT, g.AFR, g.AFR + 1, g.AFR + 2
    a(f"""
s_load_dwordx2 s[4:5], s[0:1], {KA_W1}
s_load_dwordx2 s[6:7], s[0:1], {KA_WS}
s_load_dwordx2 s[16:17], s[0:1], {KA_B1}
v_lshrrev_b32 v{T0}, 6, v{vtid}
v_and_b32 v{L}, 63, v{vtid}
v_readfirstlane_b32 s24, v{T0}       ; wave
s_and_b32 s25, s{swg}, 7             ; xcd
s_lshr_b32 s26, s{swg}, 3            ; j
s_and_b32 s27, s25, 1
s_lshl_b32 s27, s27, 2
s_and_b32 s28, s26, 3
s_add_u32 s27, s27, s28              ; Mt
s_lshr_b32 s28, s25, 1
s_lshl_b32 s28, s28, 3
s_lshr_b32 s29, s26, 2
s_add_u32 s28, s28, s29              ; Nt
""")
    if prio is not None: a(f"s_setprio {prio}")
    setup_dma(a, g, L, 24, 9216, "nat", T0, T1, T2, 34, 35)
    setup_lds_read(a, g, L, "nat", T0, T1)
    a(f"""
s_lshl_b32 s30, s27, 3
s_mul_i32 s29, s24, {MT//2}
s_add_u32 s30, s30, s29              ; rt0
s_mul_i32 s40, s30, 18432
s_add_u32 s40, s40, {WS_Y}
""")
    for mt in range(1, MT): a(f"s_add_u32 s{40+mt}, s40, {((mt//2) + 64*(mt%2))*18432}")
    a(f"""
v_lshlrev_b32 v{g.VA}, 4, v{L}
s_mul_i32 s32, s28, 288
v_lshrrev_b32 v{L+1}, 4, v{L}
v_lshlrev_b32 v{L+1}, 3, v{L+1}
s_waitcnt lgkmcnt(0)
""")
    srd(a, 8, 4, D*F*2)
    srd(a, 12, 6, WS_BYTES)
    srd(a, 20, 16, F*2)
    bias = []
    def pre_act(vm):
        for nt in range(9):
            r = g.acc(MT-2, nt)
            a(f"buffer_load_dwordx2 v[{r}:{r+1}], v{L+1}, s[20:23], s32 offen offset:{nt*32}")
            bias.append(vm.issue())
    def pro(vm):
        vm.wait(bias[-1])
        for nt in range(9):
            r = g.acc(MT-2, nt); d = g.acc(MT-1, nt)
            a(f"v_lshlrev_b32 v{d}, 16, v{r}\nv_and_b32 v{d+1}, 0xffff0000, v{r}\nv_lshlrev_b32 v{d+2}, 16, v{r+1}\nv_and_b32 v{d+3}, 0xffff0000, v{r+1}")
    def act(a, s, mt, r, vm):
        sa = 40 + mt
        a(f"buffer_load_dwordx4 v[{r}:{r+3}], v{g.VA}, s[12:15], s{sa} offen offset:{(s % 4) * 1024}{' sc1' if wait_hook else ''}")
        if s % 4 == 3: a(f"s_add_u32 s{sa}, s{sa}, 4096")
        return vm.issue()
    cfg = dict(w_srd=8, s_w=33, s_wbase=32, w_off=lambda st: st*64*9216, tr2=8*288, s_wave=24, act=act,
               first_c=lambda mt, nt: f"v[{g.acc(MT-1,nt)}:{g.acc(MT-1,nt)+3}]", s_m0=34, pre_act=pre_act, prologue_extra=pro)
    if wait_hook: cfg["wait_hook"] = lambda vm: wait_hook(a, g, vm)
    gemm_core(a, g, cfg)
    if prio is not None: a("s_setprio 0")
    a(f"""
v_mov_b32 v{L}, {f32hex(GELU_C0)}
v_lshrrev_b32 v{L+1}, 1, v{g.VA}
s_mov_b32 s36, {f32hex(GELU_C1)}
s_mul_i32 s37, s30, 147456
s_add_u32 s37, s37, {WS_H}
s_mul_i32 s38, s28, 4608
s_add_u32 s37, s37, s38
""")
    nbuf = ((g.PD + 1) * MT * 4) // 8
    if epi_hook: epi_hook(a, g)
    k = 0
    for mt in range(MT):
        a(f"s_add_u32 s46, s37, {((mt//2) + 64*(mt%2))*147456}")
        a("s_add_u32 s39, s46, 4096")
        k = store_tilegroups(a, g, mt, 46, 39, L+1, lambda r, t: gelu4(a, r, t, L, 36), k, nbuf, 8)
    stamp(a)
    if gemm.STAMPS: a("s_and_b32 s24, s24, 3")
    stamp_flush(a, swg, 24, 0x8000000)
    a("s_endpgm")

def role_g2(a, swg, g, prio=None):
    stamp(a)
    MT = g.MT
    L, T0, T1, T2 = g.VT, g.AFR, g.AFR + 1, g.AFR + 2
    a(f"""
s_load_dwordx2 s[4:5], s[0:1], {KA_W2}
s_load_dwordx2 s[6:7], s[0:1], {KA_WS}
v_lshrrev_b32 v{T0}, 6, v0
v_and_b32 v{L}, 63, v0
v_readfirstlane_b32 s24, v{T0}
s_and_b32 s25, s{swg}, 7             ; ks
s_lshr_b32 s26, s{swg}, 3
s_and_b32 s27, s26, 7                ; Mt
s_lshr_b32 s28, s26, 3               ; Nt
""")
    if prio is not None: a(f"s_setprio {prio}")
    setup_dma(a, g, L, 24, 1152, "perm", T0, T1, T2, 34, 35)
    setup_lds_read(a, g, L, "perm", T0, T1)
    a(f"""
s_lshl_b32 s30, s27, 3
s_mul_i32 s29, s24, {MT//2}
s_add_u32 s30, s30, s29
s_mul_i32 s40, s30, 147456
s_mul_i32 s29, s25, {18*1024}
s_add_u32 s40, s40, s29
s_add_u32 s40, s40, {WS_H}
""")
    for mt in range(1, MT): a(f"s_add_u32 s{40+mt}, s40, {((mt//2) + 64*(mt%2))*147456}")
    a(f"""
v_lshlrev_b32 v{g.VA}, 4, v{L}
v_lshlrev_b32 v{L+1}, 3, v{L}
s_mul_i32 s32, s28, 288
s_mul_i32 s29, s25, {576*1152}
s_add_u32 s32, s32, s29
s_mov_b32 s45, {(1<<32)//18432 + 1}
s_waitcnt lgkmcnt(0)
""")
    srd(a, 8, 4, D*F*2)
    srd(a, 12, 6, WS_BYTES)
    def act(a, s, mt, r, vm):
        sa = 40 + mt
        if s < 16:
            a(f"buffer_load_dwordx4 v[{r}:{r+3}], v{g.VA}, s[12:15], s{sa} offen offset:{(s % 4) * 1024}")
            if s % 4 == 3: a(f"s_add_u32 s{sa}, s{sa}, 4608")
            return vm.issue()
        j = s - 16
        for i in range(2):
            a(f"s_sub_u32 s44, s{sa}, {4*4608 - ((2*j+i)*4608 + 4096)}")
            a(f"buffer_load_dwordx2 v[{r+2*i}:{r+2*i+1}], v{L+1}, s[12:15], s44 offen")
            x = vm.issue()
        return x
    def w_off(st):
        if st < 8: return (144 * (st // 2) + 64 * (st % 2)) * 1152
        return 128 * 1152
    def pre_dma(st):
        if st == 8:
            for j in range(g.ND):
                a(f"v_mul_hi_u32 v{L}, v{g.VD+j}, s45")
                a(f"v_mul_u32_u24 v{L}, {128*1152}, v{L}")
                a(f"v_add_u32 v{g.VD+j}, v{g.VD+j}, v{L}")
    cfg = dict(w_srd=8, s_w=33, s_wbase=32, w_off=w_off, pre_dma=pre_dma, tr2=16*288, s_wave=24, act=act,
               first_c=lambda mt, nt: "0", s_m0=34)
    gemm_core(a, g, cfg)
    if prio is not None: a("s_setprio 0")
    a(f"""
s_lshl_b32 s37, s25, 6
s_add_u32 s37, s37, s30
s_mul_i32 s37, s37, {36*1024}
s_mul_i32 s38, s28, {9*1024}
s_add_u32 s37, s37, s38
s_add_u32 s37, s37, {WS_P}
""")
    k = 0
    for rp in range(MT // 2):
        for nt in range(9):
            if nt % 4 == 0: a(f"s_add_u32 s38, s37, {rp*36*1024 + nt*1024}")
            o = g.ACT + (k % 8) * 4; k += 1
            for x in range(2):
                r = g.acc(2*rp + x, nt)
                a(f"v_cvt_pk_bf16_f32 v{o+2*x}, v{r}, v{r+1}\nv_cvt_pk_bf16_f32 v{o+2*x+1}, v{r+2}, v{r+3}")
            a(f"buffer_store_dwordx4 v[{o}:{o+3}], v{g.VA}, s[12:15], s38 offen offset:{(nt%4)*1024}{ST_FLAG}")
    stamp(a)
    if gemm.STAMPS: a("s_and_b32 s24, s24, 3")
    stamp_flush(a, swg, 24, 0x8100000)
    a("s_endpgm")
M_ = (1<<32)//18432 + 1
for prow in range(80):
    for o in range(18):
        v = prow*1152 + o*16
        assert (v*M_) >> 32 == prow // 16
```

```python
from asmlib import *
from roles1 import *
NPF = 64
PF_WAIT = None
def role_pf(a, swg, which):
    ka = KA_W1 if which == 1 else KA_W2
    a(f"""
s_load_dwordx2 s[4:5], s[0:1], {ka}
s_load_dwordx2 s[6:7], s[0:1], {KA_WS}
v_lshrrev_b32 v1, 6, v0
v_and_b32 v2, 63, v0
v_readfirstlane_b32 s24, v1
s_and_b32 s25, s{swg}, 7             ; xcd
s_lshr_b32 s26, s{swg}, 3
s_lshl_b32 s26, s26, 2
s_add_u32 s26, s26, s24              ; widx 0..31
v_lshrrev_b32 v3, 5, v2              ; half
v_and_b32 v4, 31, v2
v_lshlrev_b32 v4, 6, v4
""")
    if which == 2:
        a(f"""
v_mul_u32_u24 v3, 147456, v3
v_add_u32 v5, v3, v4
s_mul_i32 s27, s26, {4*147456}
s_mul_i32 s28, s25, 18432
s_add_u32 s27, s27, s28
s_add_u32 s27, s27, {WS_H}
s_add_u32 s28, s27, {2*147456}
v_lshlrev_b32 v6, 6, v2
v_cmp_gt_u32 vcc, 36, v2
v_mov_b32 v7, 0x7ff00000
v_cndmask_b32 v6, v7, v6, vcc
s_mul_i32 s29, s25, {576*1152}
s_mul_i32 s30, s26, 2304
s_add_u32 s29, s29, s30
""")
    else:
        a(f"""
v_mul_u32_u24 v3, 18432, v3
v_add_u32 v5, v3, v4
s_and_b32 s27, s25, 1
s_mul_i32 s27, s27, {64*18432}
s_mul_i32 s28, s26, {2*18432}
s_add_u32 s27, s27, s28
s_add_u32 s27, s27, {WS_Y}
v_lshlrev_b32 v6, 6, v2
v_cmp_gt_u32 vcc, 36, v2
v_mov_b32 v7, 0x7ff00000
v_cndmask_b32 v6, v7, v6, vcc
s_lshr_b32 s29, s25, 1
s_mul_i32 s29, s29, 2304
s_mul_i32 s30, s26, {2*9216}
s_add_u32 s29, s29, s30
s_add_u32 s28, s29, 9216
""")
    a("s_waitcnt lgkmcnt(0)")
    srd(a, 8, 4, D*F*2)
    srd(a, 12, 6, WS_BYTES)
    for st in range(9):
        if which == 2:
            a(f"""buffer_load_dword v{10+3*st}, v6, s[8:11], s29 offen
buffer_load_dword v{11+3*st}, v5, s[12:15], s27 offen
buffer_load_dword v{12+3*st}, v5, s[12:15], s28 offen
s_add_u32 s29, s29, {64*1152}
s_add_u32 s27, s27, 2048
s_add_u32 s28, s28, 2048""")
        else:
            a(f"""buffer_load_dword v{10+3*st}, v6, s[8:11], s29 offen
buffer_load_dword v{11+3*st}, v6, s[8:11], s28 offen
buffer_load_dword v{12+3*st}, v5, s[12:15], s27 offen
s_add_u32 s29, s29, {64*9216}
s_add_u32 s28, s28, {64*9216}
s_add_u32 s27, s27, 2048""")
        if PF_WAIT is not None: a(f"s_waitcnt vmcnt({PF_WAIT})")
    a("s_endpgm")

def role_mall(a, swg, nwg, kas):
    a("v_lshlrev_b32 v1, 4, v0")
    r = 8
    for i, (ka, nb) in enumerate(kas):
        a(f"s_load_dwordx2 s[4:5], s[0:1], {ka}\ns_waitcnt lgkmcnt(0)")
        srd(a, 8, 4, nb)
        per = -(-nb // (nwg * 4096))
        a(f"s_mul_i32 s12, s{swg}, {per*4096}")
        for j in range(per):
            a(f"buffer_load_dwordx4 v[{r}:{r+3}], v1, s[8:11], s12 offen\ns_add_u32 s12, s12, 4096")
            r += 4
            if r > 56: r = 8
    a("s_endpgm")

def touch_code(a, lab_start, nbytes, vtid, vdst, stmp, vtmp):
    a(f"""s_getpc_b64 s[{stmp}:{stmp+1}]
s_add_u32 s{stmp}, s{stmp}, {lab_start}@rel32@lo+4
s_addc_u32 s{stmp+1}, s{stmp+1}, {lab_start}@rel32@hi+12
v_lshlrev_b32 v{vtmp}, 6, v{vtid}""")
    n = -(-nbytes // 16384)
    for i in range(n):
        a(f"global_load_dword v{vdst}, v{vtmp}, s[{stmp}:{stmp+1}]")
        if i + 1 < n: a(f"v_add_u32 v{vtmp}, 16384, v{vtmp}")
    return n
```

```python
from asmlib import *
from roles1 import *
from fft import *
import gemm
from gemm import stamp, stamp_flush

def role_rd2(a, swg, prio=None, wait_hook=None):
    stamp(a)
    a(f"""
s_load_dwordx2 s[6:7], s[0:1], {KA_WS}
v_lshrrev_b32 v1, 6, v0
v_and_b32 v2, 63, v0
v_readfirstlane_b32 s24, v1
s_and_b32 s25, s{swg}, 31            ; b
s_lshr_b32 s26, s{swg}, 5            ; sg
s_mul_i32 s27, s26, 6
s_add_u32 s27, s27, s24              ; st
""")
    if prio is not None: a(f"s_setprio {prio}")
    table_srd(a, 8, "tab_tf", 36*18*1024, 4)
    a("s_waitcnt lgkmcnt(0)")
    srd(a, 12, 6, WS_BYTES)
    a(f"""
v_lshlrev_b32 v3, 4, v2
s_lshr_b32 s28, s24, 1
s_lshl_b32 s28, s28, 5
s_add_u32 s28, s28, s25
s_lshl_b32 s28, s28, 1
s_and_b32 s29, s24, 1
s_add_u32 s28, s28, s29
s_mul_i32 s28, s28, {18*1024}
s_add_u32 s28, s28, {WS_XN}
s_mul_i32 s29, s24, {18*1024}
s_mov_b32 s35, 0                     ; pass
""")
    if wait_hook: wait_hook(a)
    for i in range(18):
        a(f"s_add_u32 m0, s29, {i*1024}\ns_add_u32 s31, s28, {i*1024}\nbuffer_load_dwordx4 v3, s[12:15], s31 offen{' sc1' if wait_hook else ''} lds")
    a(f"v_add_u32 v4, {36*1024}, v3")
    TB = 64
    a.label("RD_pass")
    a(f"s_mul_i32 s30, s27, {18*1024}")
    for i in range(18):
        if i % 4 == 0: a(f"s_add_u32 s31, s30, {i*1024}")
        a(f"buffer_load_dwordx4 v[{TB+4*i}:{TB+4*i+3}], v3, s[8:11], s31 offen offset:{(i%4)*1024}")
    a("s_cmp_lg_u32 s35, 0\ns_cbranch_scc1 RD_nobar\ns_waitcnt vmcnt(18)\ns_barrier")
    a.label("RD_nobar")
    AC, XF = 16, 140
    def xread(s9):
        for T in range(4):
            for eta in range(2):
                r = XF + (s9 % 2) * 32 + (T*2+eta) * 4
                off = (T * 18 + 9 * eta + s9) * 1024
                if off >= 36*1024: a(f"ds_read_b128 v[{r}:{r+3}], v4 offset:{off-36*1024}")
                else: a(f"ds_read_b128 v[{r}:{r+3}], v3 offset:{off}")
    xread(0)
    for s9 in range(9):
        if s9 + 1 < 9:
            xread(s9 + 1)
            a(f"s_waitcnt lgkmcnt(8) vmcnt({16 - 2*s9})")
        else:
            a("s_waitcnt lgkmcnt(0) vmcnt(0)")
        for hl in range(2):
            for te in range(8):
                r = XF + (s9 % 2) * 32 + te * 4
                tb = TB + (s9 * 2 + hl) * 4
                d = AC + te * 4
                c = "0" if (s9 == 0 and hl == 0) else f"v[{d}:{d+3}]"
                a(f"v_mfma_f32_16x16x32_bf16 v[{d}:{d+3}], v[{r}:{r+3}], v[{tb}:{tb+3}], {c}")
    a("s_nop 7\ns_nop 3")
    a(f"s_cmp_lt_u32 s27, 18\ns_cselect_b32 s32, 1.0, -1.0")
    for T in range(4):
        for v in range(4):
            a(f"v_fma_f32 v{AC+T*8+v}, v{AC+T*8+4+v}, s32, v{AC+T*8+v}")
    for tau in range(2):
        for v in range(4):
            a(f"v_add_f32 v{48+tau*4+v}, v{AC+tau*8+v}, v{AC+(2+tau)*8+v}")
            a(f"v_sub_f32 v{56+tau*4+v}, v{AC+tau*8+v}, v{AC+(2+tau)*8+v}")
    split_pairs(a, 48, 8, 208, 212, 224)
    split_pairs(a, 56, 8, 216, 220, 224)
    a(f"""
s_mul_i32 s33, s25, 36
s_add_u32 s33, s33, s27
s_lshl_b32 s33, s33, 12
s_add_u32 s33, s33, {WS_Z}
buffer_store_dwordx4 v[208:211], v3, s[12:15], s33 offen sc1
buffer_store_dwordx4 v[212:215], v3, s[12:15], s33 offen offset:1024 sc1
buffer_store_dwordx4 v[216:219], v3, s[12:15], s33 offen offset:2048 sc1
buffer_store_dwordx4 v[220:223], v3, s[12:15], s33 offen offset:3072 sc1
s_cmp_lg_u32 s35, 0
s_cbranch_scc1 RD_end
s_cmp_ge_u32 s24, 2
s_cbranch_scc1 RD_end
s_mov_b32 s35, 1
s_add_u32 s27, s27, 4
s_branch RD_pass
""")
    a.label("RD_end")
    stamp(a)
    stamp_flush(a, swg, 24, 0x8300000)
    a("s_endpgm")
```

```python
from asmlib import *
from roles1 import *
from fft import table_srd
import numpy as np
import gemm
from gemm import stamp, stamp_flush, Cnt

def role_ri6(a, swg, nks=8):
    stamp(a)
    a(f"""
s_load_dwordx2 s[6:7], s[0:1], {KA_WS}
s_load_dwordx2 s[16:17], s[0:1], {KA_X}
s_load_dwordx2 s[18:19], s[0:1], {KA_OUT}
s_load_dwordx2 s[44:45], s[0:1], {KA_B2}
v_lshrrev_b32 v1, 6, v0
v_and_b32 v2, 63, v0
v_readfirstlane_b32 s24, v1
s_and_b32 s25, s{swg}, 63            ; rt
s_lshr_b32 s26, s{swg}, 6            ; ng
s_mul_i32 s27, s26, 5
s_cmp_eq_u32 s26, 3
s_cselect_b32 s47, 1, 0
s_sub_u32 s27, s27, s47              ; base: 0,5,10,14
s_add_u32 s27, s27, s24              ; nt
s_cmp_lt_u32 s26, 2
s_cselect_b32 s47, 5, 4              ; count
v_lshlrev_b32 v3, 4, v2
s_mul_i32 s28, s25, {18*1024}
s_add_u32 s28, s28, {WS_V}
s_mul_i32 s30, s27, {36*1024}
s_mul_i32 s29, s24, 3072
s_add_u32 s28, s28, s29
""")
    table_srd(a, 8, "tab_ti", 18*36*1024, 4)
    a("s_waitcnt lgkmcnt(0)")
    srd(a, 12, 6, WS_BYTES)
    vm = Cnt(a, "vmcnt", 63)
    def vdma(blk):
        a(f"s_add_u32 m0, s29, {blk*18*1024}\ns_add_u32 s33, s28, {blk*64*18*1024}")
        for i in range(3):
            a(f"buffer_load_dwordx4 v3, s[12:15], s33 offen offset:{i*1024} lds"); x = vm.issue()
        return x
    TB = 64
    tid = {}
    def tload(i):
        if i % 4 == 0 or i == 18: a(f"s_add_u32 s32, s30, {(i//4)*4096}")
        a(f"buffer_load_dwordx4 v[{TB+4*i}:{TB+4*i+3}], v3, s[8:11], s32 offen offset:{(i%4)*1024}")
        tid[i] = vm.issue()
    a("s_cmp_lt_u32 s24, s47\ns_cbranch_scc1 RI_active")
    for blk in (0, 2, 1, 3):
        a(f"s_add_u32 m0, s29, {blk*18*1024}\ns_add_u32 s33, s28, {blk*64*18*1024}")
        for i in range(3): a(f"buffer_load_dwordx4 v3, s[12:15], s33 offen offset:{i*1024} lds")
    a("s_waitcnt vmcnt(6)\ns_barrier\ns_waitcnt vmcnt(0)\ns_barrier\ns_endpgm")
    a.label("RI_active")
    vdma(0); v0id = vdma(2)
    for i in range(18): tload(i)
    vdma(1); v1id = vdma(3)
    srd(a, 20, 16, S*D*2)
    srd(a, 48, 18, S*D*2)
    srd(a, 52, 44, D*2)
    XB, BB = 240, 248
    a(f"""
s_mul_i32 s31, s25, 36
s_add_u32 s31, s31, s27
s_lshl_b32 s31, s31, 10
s_add_u32 s31, s31, {WS_P}
s_mul_i32 s42, s24, 14336
s_add_u32 s42, s42, 73728
v_and_b32 v6, 15, v2
v_lshrrev_b32 v7, 3, v6
v_lshlrev_b32 v7, 4, v7
v_and_b32 v6, 7, v6
v_add_u32 v6, v6, v7
s_and_b32 s32, s25, 1
s_lshl_b32 s32, s32, 3
v_add_u32 v6, s32, v6
v_lshlrev_b32 v13, 7, v6
v_mul_u32_u24 v6, {32*1152}, v6
v_lshrrev_b32 v7, 4, v2
v_lshlrev_b32 v7, 3, v7
v_add_u32 v6, v6, v7
s_lshr_b32 s40, s25, 1
s_mul_i32 s40, s40, 1152
s_lshl_b32 s46, s27, 5
s_add_u32 s40, s40, s46
s_add_u32 s41, s40, {1024*1152}
v_add_u32 v4, {36*1024}, v3
""")
    queue = [(lambda i=i: tload(i)) for i in range(18, 36)]
    def pload(f):
        eta, ks = divmod(f, nks)
        a(f"s_add_u32 s43, s31, {ks*64*36*1024 + 18*1024*eta}")
        if f < 14: a(f"s_add_u32 m0, s42, {f*1024}\ns_nop 0\nbuffer_load_dwordx4 v3, s[12:15], s43 offen lds")
        else: a(f"buffer_load_dwordx4 v[{48+4*(f-14)}:{51+4*(f-14)}], v3, s[12:15], s43 offen")
        vm.issue()
    queue += [(lambda f=f: pload(f)) for f in range(2*nks)]
    def xl():
        for o in range(4):
            rho, eta = divmod(o, 2)
            a(f"buffer_load_dwordx2 v[{XB+2*o}:{XB+2*o+1}], v6, s[20:23], s{41 if rho else 40} offen offset:{576*eta}"); vm.issue()
        for eta in range(2):
            a(f"buffer_load_dwordx2 v[{BB+2*eta}:{BB+2*eta+1}], v7, s[52:55], s46 offen offset:{576*eta}"); vm.issue()
        a(f"s_lshr_b32 s43, s25, 1\ns_lshl_b32 s43, s43, 2\ns_add_u32 s43, s43, {WS_V288}\ns_add_u32 s34, s43, 4096")
        a("buffer_load_dword v14, v13, s[12:15], s43 offen\nbuffer_load_dword v15, v13, s[12:15], s34 offen"); vm.issue(); vm.issue()
    queue.append(xl)
    stamp(a)
    vm.wait(v0id)
    a("s_barrier")
    stamp(a)
    AC, BF = 16, 208
    steps = [(par, s) for par in range(2) for s in range(9)]
    def vread(idx):
        par, s = steps[idx]
        for pi in range(2):
            for hl in range(2):
                r = BF + (idx % 2) * 16 + (pi*2+hl) * 4
                off = ((pi*2+par) * 18 + s*2 + hl) * 1024
                if off >= 36*1024: a(f"ds_read_b128 v[{r}:{r+3}], v4 offset:{off-36*1024}")
                else: a(f"ds_read_b128 v[{r}:{r+3}], v3 offset:{off}")
    vread(0)
    for idx, (par, s) in enumerate(steps):
        for _ in range(4):
            if queue: queue.pop(0)()
        if idx == 8:
            vm.wait(v1id)
            a("s_barrier")
            stamp(a)
        n = vm.need(tid[2*idx+1])
        vs = f" vmcnt({n})" if n is not None else ""
        if idx + 1 < 18:
            vread(idx + 1)
            a(f"s_waitcnt lgkmcnt(4){vs}")
        else:
            a(f"s_waitcnt lgkmcnt(0){vs}")
        th = TB + idx * 8; tl = th + 4
        for (tt, bh) in ((th, 0), (th, 1), (tl, 0)):
            for pi in range(2):
                r = BF + (idx % 2) * 16 + (pi*2+bh) * 4
                d = AC + (pi*2+par) * 4
                c = "0" if (s == 0 and tt == th and bh == 0) else f"v[{d}:{d+3}]"
                a(f"v_mfma_f32_16x16x32_bf16 v[{d}:{d+3}], v[{tt}:{tt+3}], v[{r}:{r+3}], {c}")
    assert not queue
    stamp(a)
    a(f"s_mov_b32 s35, {f32hex(-np.log2(np.e))}\ns_waitcnt vmcnt(0)")
    stamp(a)
    a("v_add_u32 v12, s42, v3")
    for f in range(14): a(f"ds_read_b128 v[{64+4*f}:{67+4*f}], v12 offset:{f*1024}")
    started = set()
    def red(f, reg):
        eta = f // nks
        for rho in range(2):
            o = rho * 2 + eta; d = 32 + 4*o; rr = reg + 2*rho
            if o not in started:
                started.add(o)
                a(f"v_lshlrev_b32 v{d}, 16, v{rr}\nv_and_b32 v{d+1}, 0xffff0000, v{rr}\nv_lshlrev_b32 v{d+2}, 16, v{rr+1}\nv_and_b32 v{d+3}, 0xffff0000, v{rr+1}")
            else:
                t = 128 + 4 * rho
                a(f"v_lshlrev_b32 v{t}, 16, v{rr}\nv_and_b32 v{t+1}, 0xffff0000, v{rr}\nv_lshlrev_b32 v{t+2}, 16, v{rr+1}\nv_and_b32 v{t+3}, 0xffff0000, v{rr+1}")
                for v in range(4): a(f"v_add_f32 v{d+v}, v{d+v}, v{t+v}")
    red(14, 48); red(15, 52)
    for f in range(14):
        a(f"s_waitcnt lgkmcnt({13-f})")
        red(f, 64 + 4*f)
    T = 8
    def rnd4(b):
        a(f"v_cvt_pk_bf16_f32 v{T}, v{b}, v{b+1}\nv_cvt_pk_bf16_f32 v{T+1}, v{b+2}, v{b+3}")
        a(f"v_lshlrev_b32 v{b}, 16, v{T}\nv_and_b32 v{b+1}, 0xffff0000, v{T}\nv_lshlrev_b32 v{b+2}, 16, v{T+1}\nv_and_b32 v{b+3}, 0xffff0000, v{T+1}")
    def unp4(d, r):
        a(f"v_lshlrev_b32 v{d}, 16, v{r}\nv_and_b32 v{d+1}, 0xffff0000, v{r}\nv_lshlrev_b32 v{d+2}, 16, v{r+1}\nv_and_b32 v{d+3}, 0xffff0000, v{r+1}")
    for v in range(4):
        E0, O0, E1, O1 = AC+v, AC+4+v, AC+8+v, AC+12+v
        op = "v_add_f32" if v % 2 == 0 else "v_sub_f32"
        a(f"{op} v{E0}, v{E0}, v14\n{op} v{E1}, v{E1}, v15")
        a(f"""v_add_f32 v48, v{E0}, v{O0}
v_sub_f32 v49, v{E0}, v{O0}
v_add_f32 v50, v{E1}, v{O1}
v_sub_f32 v51, v{E1}, v{O1}
v_add_f32 v{64+v}, v48, v50
v_add_f32 v{68+v}, v49, v51
v_sub_f32 v{72+v}, v48, v50
v_sub_f32 v{76+v}, v49, v51""")
    stamp(a)
    for o in range(4):
        rho, eta = divmod(o, 2)
        G_ = 32 + 4*o; S_ = 64 + 4*o
        rnd4(G_)
        unp4(52, BB + 2*eta)
        for v in range(4): a(f"v_add_f32 v{G_+v}, v{G_+v}, v{52+v}")
        rnd4(G_)
        for v in range(4): a(f"v_mul_f32 v{52+v}, s35, v{G_+v}")
        for v in range(4): a(f"v_exp_f32 v{52+v}, v{52+v}")
        for v in range(4): a(f"v_add_f32 v{52+v}, 1.0, v{52+v}")
        for v in range(4): a(f"v_rcp_f32 v{52+v}, v{52+v}")
        for v in range(4): a(f"v_mul_f32 v{G_+v}, v{G_+v}, v{52+v}")
        rnd4(G_)
        rnd4(S_)
        for v in range(4): a(f"v_mul_f32 v{S_+v}, v{S_+v}, v{G_+v}")
        rnd4(S_)
        unp4(52, XB + 2*o)
        for v in range(4): a(f"v_add_f32 v{S_+v}, v{S_+v}, v{52+v}")
        a(f"v_cvt_pk_bf16_f32 v{56+2*o}, v{S_}, v{S_+1}\nv_cvt_pk_bf16_f32 v{57+2*o}, v{S_+2}, v{S_+3}")
        a(f"buffer_store_dwordx2 v[{56+2*o}:{57+2*o}], v6, s[48:51], s{41 if rho else 40} offen offset:{576*eta}")
    stamp(a)
    if gemm.STAMPS: a(f"s_lshl_b32 s{swg}, s{swg}, 1\ns_lshr_b32 s59, s24, 2\ns_add_u32 s{swg}, s{swg}, s59\ns_and_b32 s24, s24, 3")
    stamp_flush(a, swg, 24, 0x8200000)
    a("s_endpgm")
```

```python
from asmlib import *
import numpy as np

S, D, F = 2048, 576, 4608
import os
WS_BASE = int(os.environ.get("WS_BASE", "0"), 0)
WS_XN = WS_BASE + 0x0000000
WS_Y  = WS_BASE + (0x0240000 if os.environ.get('VREUSE') else 0x0400000)
WS_WT = WS_BASE + 0x0800000
WS_Z  = WS_BASE + 0x0C00000
WS_V  = WS_BASE + (0 if os.environ.get('VREUSE') else 0x1200000)
WS_H  = WS_BASE + 0x2000000
WS_P  = WS_BASE + 0x4000000
WS_V288 = WS_BASE + 0x1800000
WS_BYTES = 268435456

KA_X, KA_WR, KA_WI, KA_BX, KA_W1, KA_B1, KA_W2, KA_B2, KA_OUT, KA_DBG, KA_WS = [8*i for i in range(11)]

def f32hex(x):
    return "0x%08x" % np.float32(x).view(np.uint32)

def swz_reduce32(a, v, t):
    for off in (0x041F, 0x081F, 0x101F, 0x201F, 0x401F):
        a(f"ds_swizzle_b32 v{t}, v{v} offset:{off:#x}\ns_waitcnt lgkmcnt(0)\nv_add_f32 v{v}, v{v}, v{t}")

def rnd_bf16(a, d, s):
    a(f"v_cvt_pk_bf16_f32 v{d}, v{s}, v{s}\nv_lshlrev_b32 v{d}, 16, v{d}")

def role_ln(a, swg):
    a(f"""
s_load_dwordx2 s[4:5], s[0:1], {KA_X}
s_load_dwordx2 s[6:7], s[0:1], {KA_WS}
s_waitcnt lgkmcnt(0)
""")
    srd(a, 8, 4, S*D*2)
    srd(a, 12, 6, WS_BYTES)
    a(f"""
v_lshrrev_b32 v1, 5, v0
s_lshl_b32 s16, s{swg}, 3
v_add_u32 v1, s16, v1                ; row
v_mul_u32_u24 v1, 1152, v1
v_and_b32 v2, 31, v0
v_lshl_add_u32 v1, v2, 2, v1
""")
    for i in range(9):
        a(f"buffer_load_dword v{4+i}, v1, s[8:11], 0 offen offset:{128*i}")
    a(f"""
v_lshrrev_b32 v3, 5, v0
s_lshl_b32 s16, s{swg}, 3
v_add_u32 v3, s16, v3                ; row
v_lshrrev_b32 v45, 10, v3            ; rho
v_and_b32 v46, 31, v3                ; b
v_lshl_add_u32 v45, v45, 5, v46      ; rho*32+b
v_bfe_u32 v46, v3, 8, 1              ; tau = (a/8)%2 = bit 8 of row
v_lshl_add_u32 v45, v45, 1, v46      ; mtile
v_mul_u32_u24 v45, 18432, v45
v_bfe_u32 v46, v3, 9, 1              ; a/16
v_bfe_u32 v47, v3, 5, 3              ; a%8
v_lshl_add_u32 v46, v46, 3, v47      ; i
v_lshl_add_u32 v45, v46, 4, v45
v_bfe_u32 v46, v0, 4, 1              ; j/16
v_lshl_add_u32 v45, v46, 10, v45
v_bfe_u32 v46, v0, 2, 2              ; (j%16)/4
v_lshl_add_u32 v45, v46, 8, v45
v_and_b32 v46, 3, v0
v_lshl_add_u32 v45, v46, 2, v45
""")
    a("s_waitcnt vmcnt(0)")
    X = 16
    for i in range(9):
        a(f"v_lshlrev_b32 v{X+2*i}, 16, v{4+i}\nv_and_b32 v{X+2*i+1}, 0xffff0000, v{4+i}")
    a(f"s_mov_b32 s17, {f32hex(1.0/576)}\ns_mov_b32 s18, {f32hex(1e-5)}")
    for it, base in enumerate((WS_XN, WS_Y)):
        a(f"v_add_f32 v40, v{X}, v{X+1}")
        for i in range(2, 18):
            a(f"v_add_f32 v40, v40, v{X+i}")
        swz_reduce32(a, 40, 41)
        a("v_mul_f32 v40, s17, v40")
        a(f"v_sub_f32 v42, v{X}, v40\nv_mul_f32 v43, v42, v42")
        for i in range(1, 18):
            a(f"v_sub_f32 v42, v{X+i}, v40\nv_fmac_f32 v43, v42, v42")
        swz_reduce32(a, 43, 41)
        a("v_mul_f32 v43, s17, v43")
        rnd_bf16(a, 40, 40)
        rnd_bf16(a, 43, 43)
        a("v_add_f32 v43, s18, v43")
        rnd_bf16(a, 43, 43)
        a("v_sqrt_f32 v43, v43\ns_nop 0")
        rnd_bf16(a, 43, 43)
        a("v_rcp_f32 v43, v43\ns_nop 0")
        for i in range(9):
            a(f"""
v_sub_f32 v{X+2*i}, v{X+2*i}, v40
v_sub_f32 v{X+2*i+1}, v{X+2*i+1}, v40
v_cvt_pk_bf16_f32 v44, v{X+2*i}, v{X+2*i+1}
v_lshlrev_b32 v{X+2*i}, 16, v44
v_and_b32 v{X+2*i+1}, 0xffff0000, v44
v_mul_f32 v{X+2*i}, v{X+2*i}, v43
v_mul_f32 v{X+2*i+1}, v{X+2*i+1}, v43
v_cvt_pk_bf16_f32 v{4+i}, v{X+2*i}, v{X+2*i+1}
v_lshlrev_b32 v{X+2*i}, 16, v{4+i}
v_and_b32 v{X+2*i+1}, 0xffff0000, v{4+i}
""")
        for i in range(9):
            if i % 2 == 0: a(f"s_mov_b32 s19, {base + i*2048}")
            a(f"buffer_store_dword v{4+i}, v45, s[12:15], s19 offen offset:{2048*(i%2)}")
        a("s_waitcnt vmcnt(0)")
    a("s_endpgm")

WT_LDS_HALF = 37 * 1024
def role_wt(a, swg):
    a(f"""
s_load_dwordx2 s[4:5], s[0:1], {KA_WR}
s_load_dwordx2 s[6:7], s[0:1], {KA_WI}
s_load_dwordx2 s[16:17], s[0:1], {KA_WS}
s_waitcnt lgkmcnt(0)
""")
    srd(a, 8, 4, S*289*2)
    srd(a, 12, 6, S*289*2)
    srd(a, 20, 16, WS_BYTES)
    a(f"""
v_lshrrev_b32 v1, 6, v0
s_nop 0
v_readfirstlane_b32 s24, v1
v_and_b32 v2, 63, v0                 ; lane
v_lshlrev_b32 v3, 4, v2              ; lane*16
s_mul_i32 s25, s{swg}, 36992
s_lshl_b32 s26, s24, 10              ; wave*1024
s_add_u32 s25, s25, s26
""")
    for it in range(10):
        lab = a.uid("WT_skip")
        if it == 9:
            a(f"s_cmp_lg_u32 s24, 0\ns_cbranch_scc1 {lab}")
        a(f"""
s_add_u32 s27, s26, {it*4096}
s_mov_b32 m0, s27
s_add_u32 s28, s25, {it*4096}
buffer_load_dwordx4 v3, s[8:11], s28 offen lds
s_add_u32 s27, s27, {WT_LDS_HALF}
s_mov_b32 m0, s27
s_nop 0
buffer_load_dwordx4 v3, s[12:15], s28 offen lds
""")
        if it == 9:
            a.label(lab)
    a("s_waitcnt vmcnt(0)\ns_barrier")
    a(f"""
v_mul_u32_u24 v4, 578, v2
s_lshl_b32 s27, s24, 1
v_add_u32 v4, s27, v4
v_and_b32 v5, 1, v2                  ; pi
v_lshrrev_b32 v6, 1, v2              ; c
v_lshlrev_b32 v5, 12, v5             ; pi*16*256
v_lshl_add_u32 v5, v6, 2, v5         ; + c*4
s_lshr_b32 s28, s{swg}, 3            ; d/8
s_lshl_b32 s28, s28, 2
s_and_b32 s29, s{swg}, 3
s_add_u32 s28, s28, s29              ; v
s_lshl_b32 s28, s28, 8               ; v*256
s_lshr_b32 s29, s{swg}, 2
s_and_b32 s29, s29, 1
s_lshl_b32 s29, s29, 7               ; h*128
s_add_u32 s28, s28, s29
s_lshl_b32 s29, s24, 13              ; k*8192 (k=wave)
s_add_u32 s28, s28, s29
s_add_u32 s28, s28, {WS_WT}
s_mov_b32 s30, s24                   ; k
""")
    lab = a.uid("WT_loop")
    a.label(lab)
    a(f"""
ds_read_u16 v8, v4
ds_read_u16 v9, v4 offset:{WT_LDS_HALF}
s_waitcnt lgkmcnt(0)
v_lshl_or_b32 v8, v9, 16, v8
buffer_store_dword v8, v5, s[20:23], s28 offen
v_add_u32 v4, 8, v4
s_add_u32 s28, s28, 32768
s_add_u32 s30, s30, 4
s_cmp_lt_u32 s30, 289
s_cbranch_scc1 {lab}
s_endpgm
""")
```

```python
from asmlib import *
from roles1 import *
from fft import table_srd

def dpp_allreduce32(a, v, t):
    for r in (8, 4, 2, 1):
        a(f"s_nop 1\nv_add_f32_dpp v{v}, v{v}, v{v} row_ror:{r} row_mask:0xf bank_mask:0xf")
    a(f"v_mov_b32 v{t}, v{v}\ns_nop 1\nv_permlane16_swap_b32 v{v}, v{t}\ns_nop 1\nv_add_f32 v{v}, v{v}, v{t}")

def role_ln2(a, swg, flag=" sc1"):
    a(f"""
s_load_dwordx2 s[4:5], s[0:1], {KA_X}
s_load_dwordx2 s[6:7], s[0:1], {KA_WS}
v_lshrrev_b32 v3, 5, v0
s_lshl_b32 s16, s{swg}, 3
v_add_u32 v3, s16, v3                ; row
v_mul_u32_u24 v1, 1152, v3
v_and_b32 v2, 31, v0
v_lshl_add_u32 v1, v2, 2, v1
s_waitcnt lgkmcnt(0)
""")
    srd(a, 8, 4, S*D*2)
    for i in range(9):
        a(f"buffer_load_dword v{4+i}, v1, s[8:11], 0 offen offset:{128*i}")
    srd(a, 12, 6, WS_BYTES)
    a(f"""
v_lshrrev_b32 v45, 10, v3
v_and_b32 v46, 31, v3
v_lshl_add_u32 v45, v45, 5, v46
v_bfe_u32 v46, v3, 8, 1
v_lshl_add_u32 v45, v45, 1, v46
v_mul_u32_u24 v45, 18432, v45
v_bfe_u32 v46, v3, 9, 1
v_bfe_u32 v47, v3, 5, 3
v_lshl_add_u32 v46, v46, 3, v47
v_lshl_add_u32 v45, v46, 4, v45
v_bfe_u32 v46, v0, 4, 1
v_lshl_add_u32 v45, v46, 10, v45
v_bfe_u32 v46, v0, 2, 2
v_lshl_add_u32 v45, v46, 8, v45
v_and_b32 v46, 3, v0
v_lshl_add_u32 v45, v46, 2, v45
s_mov_b32 s17, {f32hex(1.0/576)}
s_mov_b32 s18, {f32hex(1e-5)}
s_mov_b32 s19, {WS_XN}
s_mov_b32 s20, 0
s_waitcnt vmcnt(0)
""")
    X = 16
    for i in range(9):
        a(f"v_lshlrev_b32 v{X+2*i}, 16, v{4+i}\nv_and_b32 v{X+2*i+1}, 0xffff0000, v{4+i}")
    lab = a.uid("LN_loop")
    a.label(lab)
    a(f"v_add_f32 v40, v{X}, v{X+1}\nv_add_f32 v41, v{X+2}, v{X+3}")
    for i in range(4, 18, 2):
        a(f"v_add_f32 v40, v40, v{X+i}\nv_add_f32 v41, v41, v{X+i+1}")
    a("v_add_f32 v40, v40, v41")
    dpp_allreduce32(a, 40, 41)
    a("v_mul_f32 v40, s17, v40")
    a(f"v_sub_f32 v42, v{X}, v40\nv_sub_f32 v44, v{X+1}, v40\nv_mul_f32 v43, v42, v42\nv_mul_f32 v41, v44, v44")
    for i in range(2, 18, 2):
        a(f"v_sub_f32 v42, v{X+i}, v40\nv_sub_f32 v44, v{X+i+1}, v40\nv_fmac_f32 v43, v42, v42\nv_fmac_f32 v41, v44, v44")
    a("v_add_f32 v43, v43, v41")
    dpp_allreduce32(a, 43, 41)
    a("v_mul_f32 v43, s17, v43")
    a("v_cvt_pk_bf16_f32 v41, v40, v43\nv_lshlrev_b32 v40, 16, v41\nv_and_b32 v43, 0xffff0000, v41")
    a("v_add_f32 v43, s18, v43")
    rnd_bf16(a, 43, 43)
    a("v_sqrt_f32 v43, v43\ns_nop 0")
    rnd_bf16(a, 43, 43)
    a("v_rcp_f32 v43, v43")
    a("s_waitcnt vmcnt(0)")
    for i in range(9):
        a(f"""
v_sub_f32 v{X+2*i}, v{X+2*i}, v40
v_sub_f32 v{X+2*i+1}, v{X+2*i+1}, v40
v_cvt_pk_bf16_f32 v44, v{X+2*i}, v{X+2*i+1}
v_lshlrev_b32 v{X+2*i}, 16, v44
v_and_b32 v{X+2*i+1}, 0xffff0000, v44
v_mul_f32 v{X+2*i}, v{X+2*i}, v43
v_mul_f32 v{X+2*i+1}, v{X+2*i+1}, v43
v_cvt_pk_bf16_f32 v{4+i}, v{X+2*i}, v{X+2*i+1}
v_lshlrev_b32 v{X+2*i}, 16, v{4+i}
v_and_b32 v{X+2*i+1}, 0xffff0000, v{4+i}
""")
        a(f"buffer_store_dword v{4+i}, v45, s[12:15], s19 offen offset:{2048*(i%2)}{flag}")
        if i % 2 == 1: a("s_add_u32 s19, s19, 4096")
    a(f"""
s_mov_b32 s19, {WS_Y}
s_add_u32 s20, s20, 1
s_cmp_lt_u32 s20, 2
s_cbranch_scc1 {lab}
s_endpgm
""")

def mall_stream(a, swg, nwg, items, nthreads=256):
    a("v_lshlrev_b32 v1, 4, v0")
    r = 8
    chunk = nthreads * 16
    for kind, ref, nb in items:
        if kind == "ka":
            a(f"s_load_dwordx2 s[4:5], s[0:1], {ref}\ns_waitcnt lgkmcnt(0)")
            srd(a, 8, 4, nb)
        else:
            table_srd(a, 8, ref, nb, 4)
        per = -(-nb // (nwg * chunk))
        a(f"s_mul_i32 s12, s{swg}, {per*chunk}")
        for j in range(per):
            a(f"buffer_load_dwordx4 v[{r}:{r+3}], v1, s[8:11], s12 offen\ns_add_u32 s12, s12, {chunk}")
            r += 4
            if r > 56: r = 8

WT_LDS_HALF = 37 * 1024
def role_wt2(a, swg):
    a(f"""
s_load_dwordx2 s[4:5], s[0:1], {KA_WR}
s_load_dwordx2 s[6:7], s[0:1], {KA_WI}
s_load_dwordx2 s[16:17], s[0:1], {KA_WS}
s_and_b32 s31, s{swg}, 31            ; d
s_lshr_b32 s32, s{swg}, 5            ; khalf
v_lshrrev_b32 v1, 6, v0
v_and_b32 v2, 63, v0
v_readfirstlane_b32 s24, v1
v_lshlrev_b32 v3, 4, v2
s_mul_i32 s25, s31, 36992
s_lshl_b32 s26, s24, 10
s_add_u32 s25, s25, s26
s_waitcnt lgkmcnt(0)
""")
    srd(a, 8, 4, S*289*2)
    srd(a, 12, 6, S*289*2)
    srd(a, 20, 16, WS_WT + 289*8192)
    for it in range(10):
        lab = a.uid("WT_skip")
        if it == 9: a(f"s_cmp_lg_u32 s24, 0\ns_cbranch_scc1 {lab}")
        a(f"""
s_add_u32 s27, s26, {it*4096}
s_mov_b32 m0, s27
s_add_u32 s28, s25, {it*4096}
buffer_load_dwordx4 v3, s[8:11], s28 offen lds
s_add_u32 s27, s27, {WT_LDS_HALF}
s_mov_b32 m0, s27
s_nop 0
buffer_load_dwordx4 v3, s[12:15], s28 offen lds
""")
        if it == 9: a.label(lab)
    a(f"""
v_mul_u32_u24 v4, 578, v2
s_mul_i32 s27, s32, 160
s_mul_i32 s28, s24, 40
s_add_u32 s30, s27, s28              ; k0
s_lshl_b32 s27, s30, 1
v_add_u32 v4, s27, v4
v_and_b32 v5, 1, v2
v_lshrrev_b32 v6, 1, v2
v_lshlrev_b32 v5, 12, v5
v_lshl_add_u32 v5, v6, 2, v5
s_lshr_b32 s28, s31, 3
s_lshl_b32 s28, s28, 2
s_and_b32 s29, s31, 3
s_add_u32 s28, s28, s29
s_lshl_b32 s28, s28, 8
s_lshr_b32 s29, s31, 2
s_and_b32 s29, s29, 1
s_lshl_b32 s29, s29, 7
s_add_u32 s28, s28, s29
s_lshl_b32 s29, s30, 13
s_add_u32 s28, s28, s29
s_add_u32 s28, s28, {WS_WT}
s_mov_b32 s30, 0
s_waitcnt vmcnt(0)
s_barrier
""")
    lab = a.uid("WT_loop")
    a.label(lab)
    for j in range(4):
        a(f"ds_read_u16 v{8+2*j}, v4 offset:{2*j}\nds_read_u16 v{9+2*j}, v4 offset:{WT_LDS_HALF+2*j}")
    for j in range(4):
        a(f"s_waitcnt lgkmcnt({6-2*j})\nv_lshl_or_b32 v{16+j}, v{9+2*j}, 16, v{8+2*j}\nbuffer_store_dword v{16+j}, v5, s[20:23], s28 offen\ns_add_u32 s28, s28, 8192")
    a(f"""
v_add_u32 v4, 8, v4
s_add_u32 s30, s30, 1
s_cmp_lt_u32 s30, 10
s_cbranch_scc1 {lab}
s_endpgm
""")

def role_ln3(a, swg, flag=" sc1"):
    a(f"""
s_load_dwordx2 s[4:5], s[0:1], {KA_X}
s_load_dwordx2 s[6:7], s[0:1], {KA_WS}
s_and_b32 s16, s{swg}, 1             ; hi
s_lshr_b32 s21, s{swg}, 1            ; mtile
s_and_b32 s22, s21, 1                ; tau
s_lshr_b32 s23, s21, 1               ; rho*32+b
s_and_b32 s24, s23, 31               ; b
s_lshr_b32 s23, s23, 5               ; rho
s_lshl_b32 s25, s16, 1
s_add_u32 s25, s25, s22
s_lshl_b32 s25, s25, 8               ; *8*32 rows
s_lshl_b32 s23, s23, 10
s_add_u32 s25, s25, s23
s_add_u32 s25, s25, s24
s_mul_i32 s25, s25, 1152
v_lshrrev_b32 v3, 5, v0              ; j (0..7)
v_mul_u32_u24 v1, {32*1152}, v3
v_and_b32 v2, 31, v0
v_lshl_add_u32 v1, v2, 2, v1
s_waitcnt lgkmcnt(0)
""")
    srd(a, 8, 4, S*D*2)
    for i in range(9):
        a(f"buffer_load_dword v{4+i}, v1, s[8:11], s25 offen offset:{128*i}")
    srd(a, 12, 6, WS_BYTES)
    a(f"""
v_lshrrev_b32 v45, 2, v2
v_lshlrev_b32 v45, 7, v45
v_lshl_add_u32 v45, v3, 4, v45
v_and_b32 v46, 3, v0
v_lshl_add_u32 v45, v46, 2, v45
v_lshlrev_b32 v47, 4, v0
v_lshrrev_b32 v48, 3, v0
v_lshlrev_b32 v48, 8, v48
v_and_b32 v46, 7, v0
v_lshl_add_u32 v48, v46, 4, v48
v_cmp_gt_u32 vcc, 64, v0
v_mov_b32 v49, 0x7ff00000
v_cndmask_b32 v49, v49, v48, vcc
s_mul_i32 s26, s21, 18432
s_lshl_b32 s27, s16, 7
s_add_u32 s26, s26, s27
s_mov_b32 s17, {f32hex(1.0/576)}
s_mov_b32 s18, {f32hex(1e-5)}
s_mov_b32 s20, 0
s_waitcnt vmcnt(0)
""")
    X = 16
    for i in range(9):
        a(f"v_lshlrev_b32 v{X+2*i}, 16, v{4+i}\nv_and_b32 v{X+2*i+1}, 0xffff0000, v{4+i}")
    lab = a.uid("LN_loop")
    a.label(lab)
    a(f"v_add_f32 v40, v{X}, v{X+1}\nv_add_f32 v41, v{X+2}, v{X+3}")
    for i in range(4, 18, 2):
        a(f"v_add_f32 v40, v40, v{X+i}\nv_add_f32 v41, v41, v{X+i+1}")
    a("v_add_f32 v40, v40, v41")
    dpp_allreduce32(a, 40, 41)
    a("v_mul_f32 v40, s17, v40")
    a(f"v_sub_f32 v42, v{X}, v40\nv_sub_f32 v44, v{X+1}, v40\nv_mul_f32 v43, v42, v42\nv_mul_f32 v41, v44, v44")
    for i in range(2, 18, 2):
        a(f"v_sub_f32 v42, v{X+i}, v40\nv_sub_f32 v44, v{X+i+1}, v40\nv_fmac_f32 v43, v42, v42\nv_fmac_f32 v41, v44, v44")
    a("v_add_f32 v43, v43, v41")
    dpp_allreduce32(a, 43, 41)
    a("v_mul_f32 v43, s17, v43")
    a("v_cvt_pk_bf16_f32 v41, v40, v43\nv_lshlrev_b32 v40, 16, v41\nv_and_b32 v43, 0xffff0000, v41")
    a("v_add_f32 v43, s18, v43")
    rnd_bf16(a, 43, 43)
    a("v_sqrt_f32 v43, v43\ns_nop 0")
    rnd_bf16(a, 43, 43)
    a("v_rcp_f32 v43, v43\ns_nop 0")
    for i in range(9):
        a(f"""
v_sub_f32 v{X+2*i}, v{X+2*i}, v40
v_sub_f32 v{X+2*i+1}, v{X+2*i+1}, v40
v_cvt_pk_bf16_f32 v44, v{X+2*i}, v{X+2*i+1}
v_lshlrev_b32 v{X+2*i}, 16, v44
v_and_b32 v{X+2*i+1}, 0xffff0000, v44
v_mul_f32 v{X+2*i}, v{X+2*i}, v43
v_mul_f32 v{X+2*i+1}, v{X+2*i+1}, v43
v_cvt_pk_bf16_f32 v{4+i}, v{X+2*i}, v{X+2*i+1}
v_lshlrev_b32 v{X+2*i}, 16, v{4+i}
v_and_b32 v{X+2*i+1}, 0xffff0000, v{4+i}
ds_write_b32 v45, v{4+i} offset:{1024*i}
""")
    a(f"""
v_add_u32 v45, 9216, v45
s_add_u32 s20, s20, 1
s_cmp_lt_u32 s20, 2
s_cbranch_scc1 {lab}
s_waitcnt lgkmcnt(0)
s_barrier
""")
    for arr in range(2):
        for r in range(3):
            d = 4 + (arr*3 + r) * 4
            a(f"ds_read_b128 v[{d}:{d+3}], v47 offset:{arr*9216 + r*4096}")
    for arr, base in enumerate((WS_XN, WS_Y)):
        for r in range(3):
            d = 4 + (arr*3 + r) * 4
            a(f"s_add_u32 s27, s26, {base + r*8192}")
            a(f"s_waitcnt lgkmcnt({5 - arr*3 - r})")
            a(f"buffer_store_dwordx4 v[{d}:{d+3}], v{49 if r == 2 else 48}, s[12:15], s27 offen{flag}")
    a("s_endpgm")
```

```python
import sys; sys.path.insert(0, "gen")
from roles1 import *
import gemm, gemm5, pref2
from fft import *
from roles2 import *
from ri6 import role_ri6
from cf2 import role_cf2
from rd2 import role_rd2
def epi_hook(a, g):
    a("s_lshl_b32 s46, s2, 2\ns_add_u32 s46, s46, s24")
    r = 0
    for kind, ref, nb in [("ka", KA_W2, D*F*2), ("lab", "tab_ti", 18*36*1024), ("lab", "tab_cf", 69632), ("ka", KA_B2, D*2)]:
        if kind == "ka":
            a(f"s_load_dwordx2 s[4:5], s[0:1], {ref}\ns_waitcnt lgkmcnt(0)")
            srd(a, 8, 4, nb)
        else:
            table_srd(a, 8, ref, nb, 4)
        per = -(-nb // (1024 * 1024))
        a(f"s_mul_i32 s47, s46, {per*1024}")
        for j in range(per):
            d = g.AFR + (r % g.RA) * 4; r += 1
            a(f"buffer_load_dwordx4 v[{d}:{d+3}], v{g.VA}, s[8:11], s47 offen\ns_add_u32 s47, s47, 1024")
def build(out, prio=None, stamps=False, hprio=None, w2k0=False):
    gemm.STAMPS = stamps
    g = gemm5.G(4, 4, 4, 4)
    a = Asm()
    a(f"""; v16
; @launch kernel=k0_kernel grid=(512,1,1) block=(256,1,1) lds=75776
; @launch kernel=k1_kernel grid=(456,1,1) block=(256,1,1) lds=75776
; @launch kernel=k2_kernel grid=(410,1,1) block=(256,1,1) lds=73728
; @launch kernel=k3_kernel grid=(256,1,1) block=(384,1,1) lds=145408""")
    a('.amdgcn_target "amdgcn-amd-amdhsa--gfx950"\n.text')
    kernel_header(a, "k0_kernel")
    a("s_cmp_ge_u32 s2, 256\ns_cbranch_scc1 K0_pf")
    role_ln3(a, 2)
    a.label("K0_pf")
    a("s_sub_u32 s3, s2, 256\ns_cmp_ge_u32 s3, 64\ns_cbranch_scc1 K0_code")
    role_wt2(a, 3)
    a.label("K0_code")
    a("s_cmp_ge_u32 s2, 328\ns_cbranch_scc1 K0_st\ns_cmp_lg_u32 s2, 320\ns_cbranch_scc1 K0_end")
    pref2.touch_code(a, "k1_kernel", 65536, 0, 1, 4, 2)
    a("s_endpgm")
    a.label("K0_st")
    a("s_sub_u32 s3, s2, 328\ns_cmp_ge_u32 s3, 184\ns_cbranch_scc1 K0_end")
    mall_stream(a, 3, 184, [("ka", KA_W1, D*F*2), ("lab", "tab_tf", 36*18*1024), ("ka", KA_B1, F*2)] + ([("ka", KA_W2, D*F*2), ("lab", "tab_ti", 18*36*1024), ("lab", "tab_cf", 69632), ("ka", KA_B2, D*2)] if w2k0 else []))
    a.label("K0_end")
    a("s_endpgm")
    kernel_header(a, "k1_kernel")
    a("s_cmp_ge_u32 s2, 256\ns_cbranch_scc1 K1_b")
    gemm5.role_g1(a, 2, g, prio, None if w2k0 else epi_hook)
    a.label("K1_b")
    a("s_cmp_ge_u32 s2, 264\ns_cbranch_scc1 K1_rd")
    pref2.touch_code(a, "k1_kernel", 32768, 0, 1, 4, 2)
    a("s_endpgm")
    a.label("K1_rd")
    a("s_sub_u32 s3, s2, 264\ns_cmp_ge_u32 s3, 192\ns_cbranch_scc1 K1_end")
    role_rd2(a, 3, hprio)
    a.label("K1_end")
    a("s_endpgm")
    kernel_header(a, "k2_kernel")
    a("s_cmp_ge_u32 s2, 256\ns_cbranch_scc1 K2_b")
    gemm5.role_g2(a, 2, g, prio)
    a.label("K2_b")
    a("s_cmp_ge_u32 s2, 264\ns_cbranch_scc1 K2_cf")
    pref2.touch_code(a, "k2_kernel", 32768, 0, 1, 4, 2)
    a("s_endpgm")
    a.label("K2_cf")
    a("s_sub_u32 s3, s2, 264\ns_cmp_ge_u32 s3, 146\ns_cbranch_scc1 K2_end")
    role_cf2(a, 3, hprio)
    a.label("K2_end")
    a("s_endpgm")
    kernel_header(a, "k3_kernel")
    a("s_cmp_ge_u32 s2, 256\ns_cbranch_scc1 K3_end")
    a("s_cmp_ge_u32 s2, 8\ns_cbranch_scc1 K3_a\nv_cmp_gt_u32 vcc, 320, v0\ns_cbranch_vccnz K3_a\nv_and_b32 v8, 63, v0\nv_lshlrev_b32 v8, 1, v8")
    pref2.touch_code(a, "k3_kernel", 8192, 8, 9, 4, 10)
    a("v_add_u32 v10, 64, v10\nglobal_load_dword v9, v10, s[4:5]")
    a.label("K3_a")
    role_ri6(a, 2)
    a.label("K3_end")
    a("s_endpgm")
    a(".fill 16384, 4, 0xbf800000")
    a('.section .rodata,"a"\n.p2align 6')
    a(kernel_desc("k0_kernel", 64, 40))
    a(kernel_desc("k1_kernel", 256, 100))
    a(kernel_desc("k2_kernel", 256, 100))
    a(kernel_desc("k3_kernel", 256, 100))
    emit_bytes(a, "tab_cf", cf_tables())
    emit_big_tables(a)
    open(out, "w").write(a.text())
build("v26.s", prio=2, w2k0=True)
build("v26_s.s", prio=2, w2k0=True, stamps=True)
```

```python
from asmlib import *
from roles1 import *
from fft import *
import gemm
from gemm import stamp, stamp_flush

L_TA, L_TB1, L_TW1, L_DATA, L_TB4, L_TW2 = 0, 12288, 24576, 34816, 34816, 47104

def role_cf2(a, swg, prio=None, wait_hook=None, vtid=0):
    stamp(a)
    a(f"""
s_load_dwordx2 s[6:7], s[0:1], {KA_WS}
v_lshrrev_b32 v1, 6, v{vtid}
v_and_b32 v2, 63, v{vtid}
v_readfirstlane_b32 s24, v1          ; wave w
s_and_b32 s25, s{swg}, 1             ; pi
s_lshr_b32 s26, s{swg}, 1
s_and_b32 s26, s26, 1                ; par
s_lshr_b32 s27, s{swg}, 2
""")
    if prio is not None: a(f"s_setprio {prio}")
    table_srd(a, 8, "tab_cf", 69632, 4)
    a(f"""
v_lshlrev_b32 v3, 4, v2
v_lshlrev_b32 v4, 2, v2
s_lshl_b32 s28, s27, 2
s_add_u32 s28, s28, s24
s_lshl_b32 s29, s28, 1
s_add_u32 s29, s29, s26
s_mul_i32 s30, s26, 288
s_lshl_b32 s31, s28, 1
s_add_u32 s30, s30, s31
s_cmp_eq_u32 s27, 36
s_cselect_b32 s30, 1, s30
s_and_b32 s43, s30, 7
s_and_b32 s31, s30, 8
s_lshl_b32 s31, s31, 4               ; (j0)*16 : 0 or 128
s_lshr_b32 s30, s30, 4
s_mov_b32 s46, s30                   ; st
s_lshl_b32 s30, s30, 12
s_add_u32 s30, s30, s31
s_lshl_b32 s31, s25, 11
s_add_u32 s30, s30, s31
s_add_u32 s30, s30, {WS_Z}
; DMA: wave w, instr i (0..7): runs (hg = 2w + i/4, b = 8*(i%4) + lane/8), pos p = lane%8, source piece = p ^ (b&7) = p ^ (lane/8)
v_lshrrev_b32 v11, 3, v2             ; lane/8
v_and_b32 v12, 7, v2
v_xor_b32 v12, v12, v11
v_mul_u32_u24 v11, {36*4096}, v11
v_lshl_add_u32 v11, v12, 4, v11
v_and_b32 v12, 7, v2
v_xor_b32 v13, s43, v12
v_lshlrev_b32 v13, 4, v13
v_lshl_add_u32 v13, v2, 7, v13       ; lane*128 = (h*32+b)*128 ✓.
v_xor_b32 v14, 16, v13
s_mov_b32 s32, 1.0
s_cmp_eq_u32 s29, 0
s_cselect_b32 s33, 1, 0
s_cmp_eq_u32 s29, 288
s_cselect_b32 s33, 1, s33
s_cmp_eq_u32 s33, 0
s_cbranch_scc1 CF_notspecial
s_mov_b32 s32, 0.5
CF_notspecial:
s_mul_i32 s34, s25, 12288
s_mul_i32 s35, s25, 24576
s_lshl_b32 s36, s25, 13
s_add_u32 s37, s36, 53248
s_add_u32 s36, s36, 36864
s_mul_i32 s40, s24, 3072
s_lshl_b32 s41, s24, 11
s_waitcnt lgkmcnt(0)
""")
    srd(a, 12, 6, WS_BYTES)
    def dma(src, lds, n, sshare):
        a(f"s_add_u32 s42, {src}, s{sshare}\ns_add_u32 m0, s{sshare}, {lds}\ns_nop 0")
        for i in range(n):
            a(f"buffer_load_dwordx4 v3, s[8:11], s42 offen offset:{i*1024} lds")
    dma("s34", L_TB1, 3, 40)
    dma("s36", L_TW1, 2, 41)
    dma("0", L_TA, 3, 40)
    if wait_hook: wait_hook(a)
    a(f"s_lshl_b32 s44, s24, 9\ns_add_u32 s44, s44, s30\ns_lshl_b32 s45, s24, 13")
    for i in range(8):
        a(f"s_add_u32 m0, s45, {L_DATA + i*1024}\ns_add_u32 s42, s44, {(i//4)*256 + (i%4)*8*36*4096}")
        a("buffer_load_dwordx4 v11, s[12:15], s42 offen" + (" sc1" if wait_hook else "") + " lds")
    a(f"s_min_u32 s38, s29, 288\ns_lshl_b32 s38, s38, 13\ns_lshl_b32 s39, s25, 12\ns_add_u32 s38, s38, s39\ns_add_u32 s38, s38, {WS_WT}")
    for v in range(16):
        a(f"buffer_load_dword v{CF_W+v}, v4, s[12:15], s38 offen offset:{v*256}")
    stamp(a)
    a("s_waitcnt vmcnt(16)\ns_barrier")
    stamp(a)
    def rd_tab(reg, lds, n):
        for i in range(n):
            a(f"ds_read_b128 v[{reg+4*i}:{reg+4*i+3}], v3 offset:{lds+i*1024}")
    for part, va in ((0, 13), (1, 14)):
        for hl in range(2):
            for q in range(2):
                r = CF_D + part*16 + hl*8 + q*4
                a(f"ds_read_b128 v[{r}:{r+3}], v{va} offset:{L_DATA + (hl*4+2*q)*4096}")
    a("s_waitcnt lgkmcnt(0)")
    rd_tab(CF_TB, L_TB1, 12)
    a("s_cmp_eq_u32 s33, 0\ns_cbranch_scc1 CF_hasim")
    for j in range(16): a(f"v_mov_b32 v{CF_D+16+j}, 0")
    a.label("CF_hasim")
    a("s_barrier")
    dma("s35", L_TB4, 3, 40)
    dma("s37", L_TW2, 2, 41)
    a("s_waitcnt lgkmcnt(0)")
    rd_tab(CF_TW, L_TW1, 8)
    rd_tab(CF_TA, L_TA, 6)
    cf_stage(a, CF_TB, True, False)
    stamp(a)
    rd_tab(CF_TA + 24, L_TA + 6144, 6)
    a("s_waitcnt lgkmcnt(12)")
    cf_twiddle(a, False)
    a("s_waitcnt lgkmcnt(0)")
    cf_split(a)
    stamp(a)
    cf_stage(a, CF_TA, False, False)
    stamp(a)
    a("s_waitcnt vmcnt(0) lgkmcnt(0)")
    a("s_barrier")
    a("s_cmp_lg_u32 s27, 36\ns_cbranch_scc1 CF_go\ns_cmp_eq_u32 s24, 0\ns_cbranch_scc1 CF_go\ns_endpgm")
    a.label("CF_go")
    rd_tab(CF_TW, L_TW2, 8)
    for v in range(16):
        xr, xi, w = CF_O+v, CF_O+16+v, CF_W+v
        t = CF_T + 4 * (v % 2)
        a(f"""v_lshlrev_b32 v{t}, 16, v{w}
v_and_b32 v{t+1}, 0xffff0000, v{w}
v_mul_f32 v{t}, s32, v{t}
v_mul_f32 v{t+1}, s32, v{t+1}
v_mul_f32 v{t+2}, v{xr}, v{t}
v_mul_f32 v{t+3}, v{xr}, v{t+1}
v_fma_f32 v{xr}, -v{xi}, v{t+1}, v{t+2}
v_fma_f32 v{xi}, v{xi}, v{t}, v{t+3}""")
    cf_split(a)
    a("s_waitcnt lgkmcnt(0)")
    rd_tab(CF_TB, L_TB4, 12)
    cf_stage(a, CF_TA, True, True)
    a("s_waitcnt lgkmcnt(0)")
    cf_twiddle(a, True)
    cf_split(a)
    cf_stage(a, CF_TB, False, True)
    stamp(a)
    a("s_cmp_lg_u32 s27, 36\ns_cbranch_scc1 CF_out")
    a(f"""
v_and_b32 v5, 31, v2
v_lshrrev_b32 v6, 5, v2
v_lshlrev_b32 v6, 9, v6              ; h*4*32*4
v_lshl_add_u32 v5, v5, 2, v6
s_lshl_b32 s38, s25, 12
s_add_u32 s38, s38, {WS_V288}
""")
    for v in range(16):
        a(f"buffer_store_dword v{CF_O+v}, v5, s[12:15], s38 offen offset:{(8*(v//4)+v%4)*128}")
    a("s_endpgm")
    a.label("CF_out")
    a(f"""
v_and_b32 v5, 31, v2
v_mul_u32_u24 v5, {CF_LDS_STRIDE}, v5
v_lshrrev_b32 v6, 5, v2
v_lshl_add_u32 v5, v6, 6, v5
s_lshl_b32 s38, s24, 2
v_add_u32 v5, s38, v5
""")
    for v in range(16):
        xr, xi = CF_O+v, CF_O+16+v
        t = CF_T + 4 * (v % 2)
        off = (((v // 4) % 2) * 16 + 8 * (v // 8) + v % 4) * 16
        a(f"""v_cvt_pk_bf16_f32 v{t}, v{xr}, v{xi}
v_lshlrev_b32 v{t+1}, 16, v{t}
v_and_b32 v{t+2}, 0xffff0000, v{t}
v_sub_f32 v{t+1}, v{xr}, v{t+1}
v_sub_f32 v{t+2}, v{xi}, v{t+2}
v_cvt_pk_bf16_f32 v{t+1}, v{t+1}, v{t+2}
ds_write_b32 v5, v{t} offset:{off}
ds_write_b32 v5, v{t+1} offset:{off+CF_LDS_HALF}""")
    a(f"""
v_lshrrev_b32 v6, 5, v2
v_and_b32 v7, 31, v2
v_mul_u32_u24 v8, {CF_LDS_STRIDE}, v6
v_lshl_add_u32 v8, v7, 4, v8
s_mul_i32 s38, s24, {8*CF_LDS_STRIDE}
v_add_u32 v8, s38, v8
v_lshrrev_b32 v9, 4, v2
v_mul_u32_u24 v9, {9*2048}, v9
v_and_b32 v10, 15, v2
v_lshl_add_u32 v9, v10, 4, v9
s_lshl_b32 s38, s25, 1
s_add_u32 s38, s38, s26
s_lshl_b32 s38, s38, 6
s_lshl_b32 s39, s24, 4
s_add_u32 s38, s38, s39
s_mul_i32 s38, s38, {9*2048}
s_lshr_b32 s39, s27, 2
s_lshl_b32 s39, s39, 11
s_add_u32 s38, s38, s39
s_and_b32 s39, s27, 3
s_lshl_b32 s39, s39, 8
s_add_u32 s38, s38, s39
s_add_u32 s38, s38, {WS_V}
s_waitcnt lgkmcnt(0)
""")
    stamp(a)
    a("s_barrier")
    for j in range(4):
        for hl in range(2):
            r = 16 + (j*2+hl)*4
            a(f"ds_read_b128 v[{r}:{r+3}], v8 offset:{j*2*CF_LDS_STRIDE + hl*CF_LDS_HALF}")
    for j in range(4):
        for hl in range(2):
            r = 16 + (j*2+hl)*4
            a(f"s_waitcnt lgkmcnt({7-(j*2+hl)})")
            a(f"buffer_store_dwordx4 v[{r}:{r+3}], v9, s[12:15], s38 offen offset:{hl*1024} sc1")
        if j < 3: a(f"s_add_u32 s38, s38, {4*9*2048}")
    stamp(a)
    stamp_flush(a, swg, 24, 0x8400000)
    a("s_endpgm")
```

```python
from asmlib import *
from roles1 import *

class Cnt:
    def __init__(self, a, name, maxv):
        self.a, self.name, self.maxv = a, name, maxv
        self.issued = 0
        self.done = 0
    def issue(self):
        self.issued += 1
        return self.issued - 1
    def need(self, idx):
        if idx < self.done: return None
        n = self.issued - idx - 1
        self.done = idx + 1
        return min(n, self.maxv)
    def wait(self, idx):
        n = self.need(idx)
        if n is not None:
            self.a(f"s_waitcnt {self.name}({n})")
    def wait_all(self):
        if self.done < self.issued:
            self.a(f"s_waitcnt {self.name}(0)")
            self.done = self.issued

SLAB = 9216
STAMPS = False
WARM = False
VARIANT = 'A'
STAMP_S0 = 60
_stamp_n = [0]
def stamp(a):
    if not STAMPS: return
    i = _stamp_n[0]; _stamp_n[0] += 1
    a(f"s_memtime s[{STAMP_S0+2*i}:{STAMP_S0+2*i+1}]")
    if i == 0: a("s_memrealtime s[92:93]")
def stamp_flush(a, swg, swave, base, srdws=12):
    if not STAMPS: return
    n = _stamp_n[0]; _stamp_n[0] = 0
    a("s_waitcnt lgkmcnt(0) vmcnt(0)")
    a(f"s_memtime s[{STAMP_S0+2*n}:{STAMP_S0+2*n+1}]")
    a("s_memrealtime s[94:95]")
    a("s_waitcnt lgkmcnt(0)")
    n += 1
    a(f"s_lshl_b32 s58, s{swg}, 2")
    a(f"s_add_u32 s58, s58, s{swave}")
    a(f"s_lshl_b32 s58, s58, 6")
    a(f"s_add_u32 s58, s58, {base}")
    a("v_mov_b32 v1, 0")
    for (sreg, off) in [(92, 56), (94, 60)] + [(STAMP_S0+2*i, 4*i) for i in range(n)]:
        a(f"v_mov_b32 v0, s{sreg}")
        a(f"buffer_store_dword v0, v1, s[{srdws}:{srdws+3}], s58 offen offset:{off}")
GELU_C0 = -2.0 * np.sqrt(2.0 / np.pi) * np.log2(np.e)
GELU_C1 = GELU_C0 * 0.044715

ACC = 0
ACT = 144
AFR = 208
VA  = 232
VD  = 236
VL  = 245
VT  = 247
PD, LA = 3, 5
RA = LA + 1

def acc(mt, nt): return ACC + (mt * 9 + nt) * 4

def gemm_core(a, cfg):
    NS = 18
    vm = Cnt(a, "vmcnt", 63); lg = Cnt(a, "lgkmcnt", 15)
    vm.issued = cfg.get("pre_vm", 0)
    st = cfg["stmp"]
    dma_last = {}
    def dma_list(stage):
        out = []
        for i in range(9):
            def f(i=i):
                if i == 0:
                    a(f"s_add_u32 s{st}, s{cfg['s_wslab']}, {stage * cfg['w_stage_stride']}")
                a(f"s_add_u32 m0, s{cfg['s_m0']}, {(stage % 2) * 4 * SLAB + i * 1024}")
                a("s_nop 0")
                a(f"buffer_load_dwordx4 v{VD+i}, s[{cfg['w_srd']}:{cfg['w_srd']+3}], s{st} offen lds")
                dma_last[stage] = vm.issue()
            out.append(f)
        return out
    act_last = {}
    def act_load(s):
        so, imm = cfg["act_step"](s)
        for mt in range(4):
            r = ACT + (s % (PD + 1)) * 16 + mt * 4
            a(f"buffer_load_dwordx4 v[{r}:{r+3}], v{VA+mt}, s[{cfg['act_srd']}:{cfg['act_srd']+3}], {so} offen offset:{imm}")
            act_last[s] = vm.issue()
    tr_last = {}
    def tr_read(t):
        s, nt = divmod(t, 9)
        stage, j = divmod(s, 4)
        r = AFR + (t % RA) * 4
        off = j * SLAB + nt * 32
        a(f"ds_read_b64_tr_b16 v[{r}:{r+1}], v{VL + stage % 2} offset:{off}")
        lg.issue()
        a(f"ds_read_b64_tr_b16 v[{r+2}:{r+3}], v{VL + stage % 2} offset:{off + cfg['tr2']}")
        tr_last[t] = lg.issue()
    if cfg.get("warm"):
        for stage in range(5):
            for f in dma_list(stage): f()
            a("s_waitcnt vmcnt(0)")
        for s_ in range(NS):
            act_load(s_)
            if s_ % 4 == 3: a("s_waitcnt vmcnt(0)")
        a("s_waitcnt vmcnt(0)\ns_barrier\ns_sleep 100\ns_sleep 100\ns_sleep 100\ns_sleep 100")
        vm.done = vm.issued
        _stamp_n[0] = 0
        stamp(a)
    for f in dma_list(0): f()
    act_load(0)
    for f in dma_list(1): f()
    for s in range(1, PD): act_load(s)
    if "prologue_extra" in cfg: cfg["prologue_extra"](vm)
    stamp(a)
    vm.wait(dma_last[0])
    a("s_barrier")
    stamp(a)
    NT = NS * 9
    next_read = 0
    avail_stage = 0
    pending_dma = []
    def pump_reads(upto):
        nonlocal next_read
        while next_read <= upto and next_read < NT and (next_read // 36) <= avail_stage:
            tr_read(next_read); next_read += 1
    pump_reads(LA - 1)
    for t in range(NT):
        s, nt = divmod(t, 9)
        if nt == 0:
            vm.wait(act_last[s])
            if s + PD < NS: act_load(s + PD)
        lg.wait(tr_last[t])
        ra = AFR + (t % RA) * 4
        for mt in range(4):
            rb = ACT + (s % (PD + 1)) * 16 + mt * 4
            d = acc(mt, nt)
            c = cfg["first_c"](mt, nt) if s == 0 else f"v[{d}:{d+3}]"
            a(f"v_mfma_f32_16x16x32_bf16 v[{d}:{d+3}], v[{ra}:{ra+3}], v[{rb}:{rb+3}], {c}")
            if mt == 1 and pending_dma:
                pending_dma.pop(0)()
        stage = t // 36
        if t == 36 * (stage + 1) - LA + 1 and 36 * (stage + 1) < NT:
            n = vm.need(dma_last[stage + 1])
            lg.done = lg.issued
            a(f"s_waitcnt lgkmcnt(0)" + (f" vmcnt({n})" if n is not None else ""))
            a("s_barrier")
            stamp(a)
            avail_stage = stage + 1
            if (stage + 2) * 4 < NS:
                pending_dma = dma_list(stage + 2)
        pump_reads(t + LA)
    a("s_nop 7\ns_nop 3")
    stamp(a)
    return vm

def prow_tables(kind):
    out = []
    for p in range(576):
        prow, o = divmod(p, 18)
        if kind == "nat":
            hi, r16 = divmod(prow, 16)
            inv = {0:0,1:1,2:2,3:3,4:8,5:9,6:10,7:11,8:4,9:5,10:6,11:7,12:12,13:13,14:14,15:15}[r16]
            row = hi * 16 + inv
        else:
            row = prow
        out.append((row, o))
    return out

def setup_dma_offsets(a, vlane, ldw, kind, t0, t1, t2):
    for i in range(9):
        a(f"v_add_u32 v{t0}, {64*i}, v{vlane}")
        a(f"v_mul_u32_u24 v{t1}, 3641, v{t0}\nv_lshrrev_b32 v{t1}, 16, v{t1}")
        a(f"v_mul_u32_u24 v{t2}, 18, v{t1}\nv_sub_u32 v{t0}, v{t0}, v{t2}")
        if kind == "nat":
            a(f"v_lshrrev_b32 v{t2}, 1, v{t1}\nv_xor_b32 v{t2}, v{t2}, v{t1}\nv_and_b32 v{t2}, 4, v{t2}")
            a(f"v_mul_u32_u24 v{t2}, 3, v{t2}\nv_xor_b32 v{t1}, v{t1}, v{t2}")
        a(f"v_mul_u32_u24 v{t1}, {ldw}, v{t1}")
        a(f"v_lshl_add_u32 v{VD+i}, v{t0}, 4, v{t1}")
for p in range(576): assert (p * 3641) >> 16 == p // 18

def setup_lds_read(a, vlane, kind, t0, t1):
    a(f"v_lshrrev_b32 v{t0}, 2, v{vlane}")
    if kind == "nat":
        a(f"v_and_b32 v{t1}, 8, v{t0}\nv_add_u32 v{t0}, v{t0}, v{t1}")
    a(f"v_mul_u32_u24 v{t0}, 288, v{t0}")
    a(f"v_and_b32 v{t1}, 3, v{vlane}\nv_lshl_add_u32 v{VL}, v{t1}, 3, v{t0}")
    a(f"v_add_u32 v{VL+1}, {4*SLAB}, v{VL}")

def gelu4(a, r, t, vc0, sc1):
    for j in range(4): a(f"v_mul_f32 v{t+j}, v{r+j}, v{r+j}")
    for j in range(4): a(f"v_fma_f32 v{t+j}, v{t+j}, s{sc1}, v{vc0}")
    for j in range(4): a(f"v_mul_f32 v{t+j}, v{t+j}, v{r+j}")
    for j in range(4): a(f"v_exp_f32 v{t+j}, v{t+j}")
    for j in range(4): a(f"v_add_f32 v{t+j}, 1.0, v{t+j}")
    for j in range(4): a(f"v_rcp_f32 v{t+j}, v{t+j}")
    for j in range(4): a(f"v_mul_f32 v{r+j}, v{r+j}, v{t+j}")

def role_g1(a, swg, act_base=WS_Y):
    stamp(a)
    a(f"""
s_load_dwordx2 s[4:5], s[0:1], {KA_W1}
s_load_dwordx2 s[6:7], s[0:1], {KA_WS}
s_load_dwordx2 s[16:17], s[0:1], {KA_B1}
v_mov_b32 v{VT+8}, v0
v_lshrrev_b32 v{VT}, 6, v0
v_and_b32 v{VT+7}, 63, v0            ; lane
v_readfirstlane_b32 s24, v{VT}       ; wave
s_and_b32 s25, s{swg}, 7             ; xcd
s_lshr_b32 s26, s{swg}, 3            ; j
s_and_b32 s27, s25, 1
s_lshl_b32 s27, s27, 2
s_and_b32 s28, s26, 3
s_add_u32 s27, s27, s28              ; Mt
s_lshr_b32 s28, s25, 1
s_lshl_b32 s28, s28, 3
s_lshr_b32 s29, s26, 2
s_add_u32 s28, s28, s29              ; Nt
s_waitcnt lgkmcnt(0)
""")
    srd(a, 8, 4, D*F*2)
    srd(a, 12, 6, WS_BYTES)
    srd(a, 20, 16, F*2)
    L = VT + 7
    setup_dma_offsets(a, L, 1152 if 'B' in VARIANT else 9216, "nat", VT, VT+1, VT+2)
    setup_lds_read(a, L, "nat", VT, VT+1)
    a(f"""
s_lshl_b32 s30, s27, 2
s_add_u32 s30, s30, s24
s_mul_i32 s31, s30, {64*1152}
s_add_u32 s31, s31, {act_base}
v_and_b32 v{VT}, 15, v{L}
v_mul_u32_u24 v{VT}, 1152, v{VT}
v_lshrrev_b32 v{VT+1}, 4, v{L}
v_lshl_add_u32 v{VT}, v{VT+1}, 4, v{VT}
v_add_u32 v{VA}, s31, v{VT}
v_add_u32 v{VA+1}, {16*1152}, v{VA}
v_add_u32 v{VA+2}, {32*1152}, v{VA}
v_add_u32 v{VA+3}, {48*1152}, v{VA}
s_mul_i32 s32, s28, 288              ; n0*2 bytes
s_mul_i32 s33, s24, {32*(1152 if 'B' in VARIANT else 9216)}
s_add_u32 s33, s33, s32              ; s_wslab
s_mul_i32 s34, s24, {SLAB}           ; s_m0
v_lshlrev_b32 v{VT+2}, 3, v{VT+1}
""")
    if 'A' in VARIANT:
        a(f"""
s_mul_i32 s31, s30, {4*18*1024}
s_add_u32 s31, s31, {act_base}
v_lshlrev_b32 v{VT}, 4, v{L}
v_add_u32 v{VA}, s31, v{VT}
v_add_u32 v{VA+1}, {18*1024}, v{VA}
v_add_u32 v{VA+2}, {2*18*1024}, v{VA}
v_add_u32 v{VA+3}, {3*18*1024}, v{VA}
s_mov_b32 s41, 4096
s_mov_b32 s42, 8192
s_mov_b32 s43, 12288
s_mov_b32 s44, 16384
""")
    bias_ids = []
    def pro(vm):
        for nt in range(9):
            r = acc(2, nt)
            a(f"buffer_load_dwordx2 v[{r}:{r+1}], v{VT+2}, s[20:23], s32 offen offset:{nt*32}")
            bias_ids.append(vm.issue())
        vm.wait(bias_ids[-1])
        for nt in range(9):
            r = acc(2, nt); d = acc(3, nt)
            a(f"v_lshlrev_b32 v{d}, 16, v{r}\nv_and_b32 v{d+1}, 0xffff0000, v{r}\nv_lshlrev_b32 v{d+2}, 16, v{r+1}\nv_and_b32 v{d+3}, 0xffff0000, v{r+1}")
    def act_stepA(s):
        q, r = divmod(s, 4)
        return (0 if q == 0 else f"s{40+q}", r * 1024)
    LDW = 1152 if 'B' in VARIANT else 9216
    cfg = dict(act_srd=12, act_step=(act_stepA if 'A' in VARIANT else lambda s: (0, s*64)), w_srd=8, s_wslab=33, w_stage_stride=128*LDW,
               tr2=8*288, first_c=lambda mt, nt: f"v[{acc(3,nt)}:{acc(3,nt)+3}]", s_m0=34, stmp=35, prologue_extra=pro, warm=WARM)
    gemm_core(a, cfg)
    a(f"""
v_mov_b32 v{VT}, {f32hex(GELU_C0)}
s_mov_b32 s36, {f32hex(GELU_C1)}
v_lshlrev_b32 v{VT+1}, 4, v{L}       ; lane*16
s_mul_i32 s37, s30, {4*147456}
s_add_u32 s37, s37, {WS_H}
s_mul_i32 s38, s28, 9                ; T0
""")
    for nt in range(9):
        a(f"""
s_add_u32 s39, s38, {nt}
s_lshr_b32 s40, s39, 1
s_lshl_b32 s40, s40, 10
s_and_b32 s39, s39, 1
s_lshl_b32 s39, s39, 3
s_add_u32 s40, s40, s39
s_add_u32 s40, s40, s37
""")
        for mt in range(4):
            r = acc(mt, nt); t = ACT + ((nt*4+mt) % 8) * 8
            gelu4(a, r, t, VT, 36)
            a(f"v_cvt_pk_bf16_f32 v{t+4}, v{r}, v{r+1}\nv_cvt_pk_bf16_f32 v{t+5}, v{r+2}, v{r+3}")
            a(f"buffer_store_dwordx2 v[{t+4}:{t+5}], v{VT+1}, s[12:15], s40 offen")
            if mt < 3: a(f"s_add_u32 s40, s40, 147456")
    stamp(a)
    stamp_flush(a, swg, 24, 0x8000000)
    a("s_endpgm")

def role_g2(a, swg):
    stamp(a)
    a(f"""
s_load_dwordx2 s[4:5], s[0:1], {KA_W2}
s_load_dwordx2 s[6:7], s[0:1], {KA_WS}
v_lshrrev_b32 v{VT}, 6, v0
v_and_b32 v{VT+7}, 63, v0            ; lane
v_readfirstlane_b32 s24, v{VT}       ; wave
s_and_b32 s25, s{swg}, 7             ; ks
s_lshr_b32 s26, s{swg}, 3
s_and_b32 s27, s26, 7                ; Mt
s_lshr_b32 s28, s26, 3               ; Nt
s_waitcnt lgkmcnt(0)
""")
    srd(a, 8, 4, D*F*2)
    srd(a, 12, 6, WS_BYTES)
    a(f"s_add_u32 s29, s25, 1\ns_mul_i32 s10, s29, {576*1152}")
    L = VT + 7
    setup_dma_offsets(a, L, 1152, "perm", VT, VT+1, VT+2)
    setup_lds_read(a, L, "perm", VT, VT+1)
    a(f"""
s_lshl_b32 s30, s27, 2
s_add_u32 s30, s30, s24
s_mul_i32 s31, s30, {4*147456}
s_mul_i32 s29, s25, {18*1024}
s_add_u32 s31, s31, s29
s_add_u32 s31, s31, {WS_H}
v_lshlrev_b32 v{VT}, 4, v{L}
v_add_u32 v{VA}, s31, v{VT}
v_add_u32 v{VA+1}, 147456, v{VA}
v_add_u32 v{VA+2}, {2*147456}, v{VA}
v_add_u32 v{VA+3}, {3*147456}, v{VA}
s_mul_i32 s32, s28, 288              ; n0*2
s_mul_i32 s33, s24, {32*1152}
s_add_u32 s33, s33, s32
s_mul_i32 s29, s25, {576*1152}
s_add_u32 s33, s33, s29              ; s_wslab
s_mul_i32 s34, s24, {SLAB}
s_mov_b32 s41, 4096
s_mov_b32 s42, 8192
s_mov_b32 s43, 12288
s_mov_b32 s44, 16384
""")
    def act_step(s):
        q, r = divmod(s, 4)
        return (0 if q == 0 else f"s{40+q}", r * 1024)
    cfg = dict(act_srd=12, act_step=act_step, w_srd=8, s_wslab=33, w_stage_stride=128*1152,
               tr2=16*288, first_c=lambda mt, nt: "0", s_m0=34, stmp=35, warm=WARM)
    gemm_core(a, cfg)
    a(f"""
v_lshlrev_b32 v{VT+1}, 3, v{L}       ; lane*8
s_lshl_b32 s37, s25, 7               ; ks*128
s_lshl_b32 s38, s30, 2
s_add_u32 s37, s37, s38              ; + mtile0
s_mul_i32 s37, s37, {36*512}
s_mul_i32 s38, s28, {9*512}
s_add_u32 s37, s37, s38
s_add_u32 s37, s37, {WS_P}
""")
    for mt in range(4):
        for nt in range(9):
            r = acc(mt, nt); t = ACT + ((nt*4+mt) % 16) * 2
            a(f"v_cvt_pk_bf16_f32 v{t}, v{r}, v{r+1}\nv_cvt_pk_bf16_f32 v{t+1}, v{r+2}, v{r+3}")
            off = nt * 512
            if off >= 4096:
                a(f"s_add_u32 s38, s37, 4096")
                a(f"buffer_store_dwordx2 v[{t}:{t+1}], v{VT+1}, s[12:15], s38 offen offset:{off-4096}")
            else:
                a(f"buffer_store_dwordx2 v[{t}:{t+1}], v{VT+1}, s[12:15], s37 offen offset:{off}")
        if mt < 3: a(f"s_add_u32 s37, s37, {36*512}")
    stamp(a)
    stamp_flush(a, swg, 24, 0x8100000)
    a("s_endpgm")


def gelu4pk(a, r, t, vc0, sc1, s11):
    for j in (0, 2): a(f"v_pk_mul_f32 v[{t+j}:{t+j+1}], v[{r+j}:{r+j+1}], v[{r+j}:{r+j+1}]")
    for j in (0, 2): a(f"v_pk_fma_f32 v[{t+j}:{t+j+1}], v[{t+j}:{t+j+1}], s[{sc1}:{sc1+1}], v[{vc0}:{vc0+1}]")
    for j in (0, 2): a(f"v_pk_mul_f32 v[{t+j}:{t+j+1}], v[{t+j}:{t+j+1}], v[{r+j}:{r+j+1}]")
    for j in range(4): a(f"v_exp_f32 v{t+j}, v{t+j}")
    for j in (0, 2): a(f"v_pk_add_f32 v[{t+j}:{t+j+1}], v[{t+j}:{t+j+1}], s[{s11}:{s11+1}]")
    for j in range(4): a(f"v_rcp_f32 v{t+j}, v{t+j}")
    for j in (0, 2): a(f"v_pk_mul_f32 v[{r+j}:{r+j+1}], v[{r+j}:{r+j+1}], v[{t+j}:{t+j+1}]")
```

```python
from asmlib import *
from roles1 import *
import gemm
from gemm import Cnt, stamp, stamp_flush, GELU_C0, GELU_C1, gelu4

SLAB = 9216
STG = 2 * SLAB
ST_FLAG = " sc1"
PK = False

class G:
    def __init__(s, NW=4, MT=4, PD=4, LA=4, NRING=4, second=False):
        s.NW, s.MT, s.PD, s.LA, s.NRING = NW, MT, PD, LA, NRING
        s.RA = LA + 1
        s.ACC = 0
        s.ACT = MT * 36
        s.AFR = s.ACT + (PD + 1) * MT * 4
        s.VA = s.AFR + s.RA * 4
        s.ND = -(-18 // NW)
        s.NOPT = 18 - NW * (s.ND - 1)
        s.VD = s.VA + 1
        s.VL = s.VD + s.ND
        s.VT = s.VL + 2
        s.NREG = s.VT + 2
        s.LDS = NRING * STG
    def acc(s, mt, nt): return s.ACC + (mt * 9 + nt) * 4

def gemm_core(a, g, cfg):
    NS = 18; NSTG = 9; NT = NS * 9
    stamp = (lambda a: None) if cfg.get('nostamp') else gemm.stamp
    PD, LA, RA, MT, NR = g.PD, g.LA, g.RA, g.MT, g.NRING
    vm = Cnt(a, "vmcnt", 63); lg = Cnt(a, "lgkmcnt", 15)
    wsrd = cfg["w_srd"]
    dma_last = {}; act_last = {}; tr_last = {}; act_cnt = {}; dma_done = set()
    def dma_ops(st):
        out = []
        slot = st % NR
        order = [g.ND - 1] + list(range(g.ND - 1))
        for j in order:
            def f(j=j):
                opt = (j == g.ND - 1) and g.NOPT < g.NW
                if j == order[0]:
                    if "pre_dma" in cfg: cfg["pre_dma"](st)
                    a(f"s_add_u32 s{cfg['s_w']}, s{cfg['s_wbase']}, {cfg['w_off'](st)}")
                if opt:
                    lab = a.uid("dsk")
                    a(f"s_cmp_ge_u32 s{cfg['s_wave']}, {g.NOPT}\ns_cbranch_scc1 {lab}")
                a(f"s_add_u32 m0, s{cfg['s_m0']}, {slot * STG + j * g.NW * 1024}")
                a("s_nop 0")
                a(f"buffer_load_dwordx4 v{g.VD+j}, s[{wsrd}:{wsrd+3}], s{cfg['s_w']} offen lds")
                if opt: a.label(lab)
                else: dma_last[st] = vm.issue()
                if j == order[-1]: dma_done.add(st)
            out.append(f)
        return out
    def act_ops(s):
        out = []
        for mt in range(MT):
            def f(mt=mt):
                r = g.ACT + ((s % (PD + 1)) * MT + mt) * 4
                act_last[s] = cfg["act"](a, s, mt, r, vm)
                act_cnt[s] = act_cnt.get(s, 0) + 1
            out.append(f)
        return out
    def tr_read(t):
        s, nt = divmod(t, 9)
        st, j = divmod(s, 2)
        slot = st % NR
        r = g.AFR + (t % RA) * 4
        off = (slot % 2) * STG + j * SLAB + nt * 32
        vl = g.VL + slot // 2
        a(f"ds_read_b64_tr_b16 v[{r}:{r+1}], v{vl} offset:{off}")
        lg.issue()
        a(f"ds_read_b64_tr_b16 v[{r+2}:{r+3}], v{vl} offset:{off + cfg['tr2']}")
        tr_last[t] = lg.issue()
    for f in dma_ops(0): f()
    if "pre_act" in cfg: cfg["pre_act"](vm)
    if "wait_hook" in cfg:
        for st_ in range(1, NR):
            for f in dma_ops(st_): f()
        cfg["wait_hook"](vm)
        for s in range(0, 3):
            for f in act_ops(s): f()
        queue = []
        for s in range(3, PD + 1): queue += act_ops(s)
    else:
        for f in act_ops(0): f()
        for f in act_ops(1): f()
        for f in dma_ops(1): f()
        queue = act_ops(2) + dma_ops(2) + act_ops(3) + dma_ops(3)
        for s in range(4, PD + 1): queue += act_ops(s)
    next_act = max(PD + 1, 4)
    if "prologue_extra" in cfg: cfg["prologue_extra"](vm)
    stamp(a)
    vm.wait(dma_last[0])
    a("s_barrier")
    stamp(a)
    next_read = 0; avail = 0
    def pump_reads(upto):
        nonlocal next_read
        while next_read <= upto and next_read < NT and (next_read // 18) <= avail:
            tr_read(next_read); next_read += 1
    pump_reads(LA - 1)
    for t in range(NT):
        s, nt = divmod(t, 9)
        if nt == 0:
            if s >= 1 and next_act < NS:
                queue += act_ops(next_act); next_act += 1
            while act_cnt.get(s, 0) < MT: queue.pop(0)()
            vm.wait(act_last[s])
        lg.wait(tr_last[t])
        ra = g.AFR + (t % RA) * 4
        for mt in range(MT):
            rb = g.ACT + ((s % (PD + 1)) * MT + mt) * 4
            d = g.acc(mt, nt)
            c = cfg["first_c"](mt, nt) if s == 0 else f"v[{d}:{d+3}]"
            a(f"v_mfma_f32_16x16x32_bf16 v[{d}:{d+3}], v[{ra}:{ra+3}], v[{rb}:{rb+3}], {c}")
            if mt == max(MT // 2 - 1, 0) and queue: queue.pop(0)()
            if mt == MT - 1 and len(queue) > 6: queue.pop(0)()
        st = t // 18
        if t == 18 * (st + 1) - LA + 1 and st + 1 < NSTG:
            while (st + 1) not in dma_done: queue.pop(0)()
            n = vm.need(dma_last[st + 1])
            lg.done = lg.issued
            a("s_waitcnt lgkmcnt(0)" + (f" vmcnt({n})" if n is not None else ""))
            a("s_barrier")
            if st % 2 == 1: stamp(a)
            avail = st + 1
            if st + NR < NSTG: queue += dma_ops(st + NR)
        pump_reads(t + LA)
    assert not queue
    a("s_nop 7\ns_nop 3")
    stamp(a)
    return vm

def setup_dma(a, g, vlane, swave, ldw, kind, t0, t1, t2, s_m0, stmp):
    a(f"s_lshl_b32 s{stmp}, s{swave}, 6")
    for j in range(g.ND):
        a(f"v_add_u32 v{t0}, s{stmp}, v{vlane}")
        if j: a(f"v_add_u32 v{t0}, {64*g.NW*j}, v{t0}")
        a(f"v_mul_u32_u24 v{t1}, 3641, v{t0}\nv_lshrrev_b32 v{t1}, 16, v{t1}")
        a(f"v_mul_u32_u24 v{t2}, 18, v{t1}\nv_sub_u32 v{t0}, v{t0}, v{t2}")
        if kind == "nat":
            a(f"v_lshrrev_b32 v{t2}, 1, v{t1}\nv_xor_b32 v{t2}, v{t2}, v{t1}\nv_and_b32 v{t2}, 4, v{t2}")
            a(f"v_mul_u32_u24 v{t2}, 3, v{t2}\nv_xor_b32 v{t1}, v{t1}, v{t2}")
        a(f"v_mul_u32_u24 v{t1}, {ldw}, v{t1}")
        a(f"v_lshl_add_u32 v{g.VD+j}, v{t0}, 4, v{t1}")
    a(f"s_lshl_b32 s{s_m0}, s{swave}, 10")

def setup_lds_read(a, g, vlane, kind, t0, t1):
    a(f"v_lshrrev_b32 v{t0}, 2, v{vlane}")
    if kind == "nat":
        a(f"v_and_b32 v{t1}, 8, v{t0}\nv_add_u32 v{t0}, v{t0}, v{t1}")
    a(f"v_mul_u32_u24 v{t0}, 288, v{t0}")
    a(f"v_and_b32 v{t1}, 3, v{vlane}\nv_lshl_add_u32 v{g.VL}, v{t1}, 3, v{t0}")
    a(f"v_add_u32 v{g.VL+1}, {2*STG}, v{g.VL}")

def store_tilegroups(a, g, mt, sbase, s2, v8, conv, k0, nbuf, tsz):
    k = k0
    for gi in range(5):
        t = g.ACT + (k % nbuf) * tsz; k += 1
        o = t + tsz - 4
        for x in range(2 if gi < 4 else 1):
            r = g.acc(mt, 2*gi + x)
            conv(r, t)
            a(f"v_cvt_pk_bf16_f32 v{o+2*x}, v{r}, v{r+1}\nv_cvt_pk_bf16_f32 v{o+2*x+1}, v{r+2}, v{r+3}")
        if gi < 4: a(f"buffer_store_dwordx4 v[{o}:{o+3}], v{g.VA}, s[12:15], s{sbase} offen offset:{gi*1024}{ST_FLAG}")
        else: a(f"buffer_store_dwordx2 v[{o}:{o+1}], v{v8}, s[12:15], s{s2} offen{ST_FLAG}")
    return k

def role_g1(a, swg, g, prio=None, epi_hook=None, wait_hook=None, vtid=0):
    stamp(a)
    MT = g.MT
    L, T0, T1, T2 = g.VT, g.AFR, g.AFR + 1, g.AFR + 2
    a(f"""
s_load_dwordx2 s[4:5], s[0:1], {KA_W1}
s_load_dwordx2 s[6:7], s[0:1], {KA_WS}
s_load_dwordx2 s[16:17], s[0:1], {KA_B1}
v_lshrrev_b32 v{T0}, 6, v{vtid}
v_and_b32 v{L}, 63, v{vtid}
v_readfirstlane_b32 s24, v{T0}       ; wave
s_and_b32 s25, s{swg}, 7             ; xcd
s_lshr_b32 s26, s{swg}, 3            ; j
s_and_b32 s27, s25, 1
s_lshl_b32 s27, s27, 2
s_and_b32 s28, s26, 3
s_add_u32 s27, s27, s28              ; Mt
s_lshr_b32 s28, s25, 1
s_lshl_b32 s28, s28, 3
s_lshr_b32 s29, s26, 2
s_add_u32 s28, s28, s29              ; Nt
""")
    if prio is not None: a(f"s_setprio {prio}")
    setup_dma(a, g, L, 24, 9216, "nat", T0, T1, T2, 34, 35)
    setup_lds_read(a, g, L, "nat", T0, T1)
    a(f"""
s_lshl_b32 s30, s27, 3
s_mul_i32 s29, s24, {MT//2}
s_add_u32 s30, s30, s29              ; rt0
s_mul_i32 s40, s30, 18432
s_add_u32 s40, s40, {WS_Y}
""")
    for mt in range(1, MT): a(f"s_add_u32 s{40+mt}, s40, {((mt//2) + 64*(mt%2))*18432}")
    a(f"""
v_lshlrev_b32 v{g.VA}, 4, v{L}
s_mul_i32 s32, s28, 288
v_lshrrev_b32 v{L+1}, 4, v{L}
v_lshlrev_b32 v{L+1}, 3, v{L+1}
s_waitcnt lgkmcnt(0)
""")
    srd(a, 8, 4, D*F*2)
    srd(a, 12, 6, WS_BYTES)
    srd(a, 20, 16, F*2)
    bias = []
    def pre_act(vm):
        for nt in range(9):
            r = g.acc(MT-2, nt)
            a(f"buffer_load_dwordx2 v[{r}:{r+1}], v{L+1}, s[20:23], s32 offen offset:{nt*32}")
            bias.append(vm.issue())
    def pro(vm):
        vm.wait(bias[-1])
        for nt in range(9):
            r = g.acc(MT-2, nt); d = g.acc(MT-1, nt)
            a(f"v_lshlrev_b32 v{d}, 16, v{r}\nv_and_b32 v{d+1}, 0xffff0000, v{r}\nv_lshlrev_b32 v{d+2}, 16, v{r+1}\nv_and_b32 v{d+3}, 0xffff0000, v{r+1}")
    def act(a, s, mt, r, vm):
        sa = 40 + mt
        a(f"buffer_load_dwordx4 v[{r}:{r+3}], v{g.VA}, s[12:15], s{sa} offen offset:{(s % 4) * 1024}{' sc1' if wait_hook else ''}")
        if s % 4 == 3: a(f"s_add_u32 s{sa}, s{sa}, 4096")
        return vm.issue()
    cfg = dict(w_srd=8, s_w=33, s_wbase=32, w_off=lambda st: st*64*9216, tr2=8*288, s_wave=24, act=act,
               first_c=lambda mt, nt: f"v[{g.acc(MT-1,nt)}:{g.acc(MT-1,nt)+3}]", s_m0=34, pre_act=pre_act, prologue_extra=pro)
    if wait_hook: cfg["wait_hook"] = lambda vm: wait_hook(a, g, vm)
    gemm_core(a, g, cfg)
    if prio is not None: a("s_setprio 0")
    a(f"""
v_mov_b32 v{L}, {f32hex(GELU_C0)}
v_lshrrev_b32 v{L+1}, 1, v{g.VA}
s_mov_b32 s36, {f32hex(GELU_C1)}
s_mul_i32 s37, s30, 147456
s_add_u32 s37, s37, {WS_H}
s_mul_i32 s38, s28, 4608
s_add_u32 s37, s37, s38
""")
    nbuf = ((g.PD + 1) * MT * 4) // 8
    if epi_hook: epi_hook(a, g)
    k = 0
    C0P = g.AFR + 4
    a(f"v_mov_b32 v{C0P}, v{L}\nv_mov_b32 v{C0P+1}, v{L}\ns_mov_b32 s50, s36\ns_mov_b32 s51, s36\ns_mov_b32 s52, 1.0\ns_mov_b32 s53, 1.0")
    gl = (lambda r, t: gemm.gelu4pk(a, r, t, C0P, 50, 52)) if PK else (lambda r, t: gelu4(a, r, t, L, 36))
    for mt in range(MT):
        a(f"s_add_u32 s46, s37, {((mt//2) + 64*(mt%2))*147456}")
        a("s_add_u32 s39, s46, 4096")
        k = store_tilegroups(a, g, mt, 46, 39, L+1, gl, k, nbuf, 8)
    stamp(a)
    if gemm.STAMPS: a("s_and_b32 s24, s24, 3")
    stamp_flush(a, swg, 24, 0x8000000)
    a("s_endpgm")

def role_g2(a, swg, g, prio=None):
    stamp(a)
    MT = g.MT
    L, T0, T1, T2 = g.VT, g.AFR, g.AFR + 1, g.AFR + 2
    a(f"""
s_load_dwordx2 s[4:5], s[0:1], {KA_W2}
s_load_dwordx2 s[6:7], s[0:1], {KA_WS}
v_lshrrev_b32 v{T0}, 6, v0
v_and_b32 v{L}, 63, v0
v_readfirstlane_b32 s24, v{T0}
s_and_b32 s25, s{swg}, 7             ; ks
s_lshr_b32 s26, s{swg}, 3
s_and_b32 s27, s26, 7                ; Mt
s_lshr_b32 s28, s26, 3               ; Nt
""")
    if prio is not None: a(f"s_setprio {prio}")
    setup_dma(a, g, L, 24, 1152, "perm", T0, T1, T2, 34, 35)
    setup_lds_read(a, g, L, "perm", T0, T1)
    a(f"""
s_lshl_b32 s30, s27, 3
s_mul_i32 s29, s24, {MT//2}
s_add_u32 s30, s30, s29
s_mul_i32 s40, s30, 147456
s_mul_i32 s29, s25, {18*1024}
s_add_u32 s40, s40, s29
s_add_u32 s40, s40, {WS_H}
""")
    for mt in range(1, MT): a(f"s_add_u32 s{40+mt}, s40, {((mt//2) + 64*(mt%2))*147456}")
    a(f"""
v_lshlrev_b32 v{g.VA}, 4, v{L}
v_lshlrev_b32 v{L+1}, 3, v{L}
s_mul_i32 s32, s28, 288
s_mul_i32 s29, s25, {576*1152}
s_add_u32 s32, s32, s29
s_mov_b32 s45, {(1<<32)//18432 + 1}
s_waitcnt lgkmcnt(0)
""")
    srd(a, 8, 4, D*F*2)
    srd(a, 12, 6, WS_BYTES)
    def act(a, s, mt, r, vm):
        sa = 40 + mt
        if s < 16:
            a(f"buffer_load_dwordx4 v[{r}:{r+3}], v{g.VA}, s[12:15], s{sa} offen offset:{(s % 4) * 1024}")
            if s % 4 == 3: a(f"s_add_u32 s{sa}, s{sa}, 4608")
            return vm.issue()
        j = s - 16
        for i in range(2):
            a(f"s_sub_u32 s44, s{sa}, {4*4608 - ((2*j+i)*4608 + 4096)}")
            a(f"buffer_load_dwordx2 v[{r+2*i}:{r+2*i+1}], v{L+1}, s[12:15], s44 offen")
            x = vm.issue()
        return x
    def w_off(st):
        if st < 8: return (144 * (st // 2) + 64 * (st % 2)) * 1152
        return 128 * 1152
    def pre_dma(st):
        if st == 8:
            for j in range(g.ND):
                a(f"v_mul_hi_u32 v{L}, v{g.VD+j}, s45")
                a(f"v_mul_u32_u24 v{L}, {128*1152}, v{L}")
                a(f"v_add_u32 v{g.VD+j}, v{g.VD+j}, v{L}")
    cfg = dict(w_srd=8, s_w=33, s_wbase=32, w_off=w_off, pre_dma=pre_dma, tr2=16*288, s_wave=24, act=act,
               first_c=lambda mt, nt: "0", s_m0=34)
    gemm_core(a, g, cfg)
    if prio is not None: a("s_setprio 0")
    a(f"""
s_lshl_b32 s37, s25, 6
s_add_u32 s37, s37, s30
s_mul_i32 s37, s37, {36*1024}
s_mul_i32 s38, s28, {9*1024}
s_add_u32 s37, s37, s38
s_add_u32 s37, s37, {WS_P}
""")
    k = 0
    for rp in range(MT // 2):
        for nt in range(9):
            if nt % 4 == 0: a(f"s_add_u32 s38, s37, {rp*36*1024 + nt*1024}")
            o = g.ACT + (k % 8) * 4; k += 1
            for x in range(2):
                r = g.acc(2*rp + x, nt)
                a(f"v_cvt_pk_bf16_f32 v{o+2*x}, v{r}, v{r+1}\nv_cvt_pk_bf16_f32 v{o+2*x+1}, v{r+2}, v{r+3}")
            a(f"buffer_store_dwordx4 v[{o}:{o+3}], v{g.VA}, s[12:15], s38 offen offset:{(nt%4)*1024}{ST_FLAG}")
    stamp(a)
    if gemm.STAMPS: a("s_and_b32 s24, s24, 3")
    stamp_flush(a, swg, 24, 0x8100000)
    a("s_endpgm")
M_ = (1<<32)//18432 + 1
for prow in range(80):
    for o in range(18):
        v = prow*1152 + o*16
        assert (v*M_) >> 32 == prow // 16
```

```python
from asmlib import *
from roles1 import *
from fft import *
import gemm
from gemm import stamp, stamp_flush

def role_rd2(a, swg, prio=None, wait_hook=None, end_hook=None, gate_hook=None):
    stamp(a)
    a(f"""
s_load_dwordx2 s[6:7], s[0:1], {KA_WS}
v_lshrrev_b32 v1, 6, v0
v_and_b32 v2, 63, v0
v_readfirstlane_b32 s24, v1
s_and_b32 s25, s{swg}, 31            ; b
s_lshr_b32 s26, s{swg}, 5            ; sg
s_mul_i32 s27, s26, 6
s_add_u32 s27, s27, s24              ; st
""")
    if prio is not None: a(f"s_setprio {prio}")
    table_srd(a, 8, "tab_tf", 36*18*1024, 4)
    a("s_waitcnt lgkmcnt(0)")
    srd(a, 12, 6, WS_BYTES)
    a(f"""
v_lshlrev_b32 v3, 4, v2
s_lshr_b32 s28, s24, 1
s_lshl_b32 s28, s28, 5
s_add_u32 s28, s28, s25
s_lshl_b32 s28, s28, 1
s_and_b32 s29, s24, 1
s_add_u32 s28, s28, s29
s_mul_i32 s28, s28, {18*1024}
s_add_u32 s28, s28, {WS_XN}
s_mul_i32 s29, s24, {18*1024}
s_mov_b32 s35, 0                     ; pass
""")
    if wait_hook: wait_hook(a)
    for i in range(18):
        a(f"s_add_u32 m0, s29, {i*1024}\ns_add_u32 s31, s28, {i*1024}\nbuffer_load_dwordx4 v3, s[12:15], s31 offen{' sc1' if wait_hook else ''} lds")
    a(f"v_add_u32 v4, {36*1024}, v3")
    TB = 64
    a.label("RD_pass")
    a(f"s_mul_i32 s30, s27, {18*1024}")
    for i in range(18):
        if i % 4 == 0: a(f"s_add_u32 s31, s30, {i*1024}")
        a(f"buffer_load_dwordx4 v[{TB+4*i}:{TB+4*i+3}], v3, s[8:11], s31 offen offset:{(i%4)*1024}")
    a("s_cmp_lg_u32 s35, 0\ns_cbranch_scc1 RD_nobar\ns_waitcnt vmcnt(18)")
    if gate_hook: gate_hook(a)
    else: a("s_barrier")
    a.label("RD_nobar")
    AC, XF = 16, 140
    def xread(s9):
        for T in range(4):
            for eta in range(2):
                r = XF + (s9 % 2) * 32 + (T*2+eta) * 4
                off = (T * 18 + 9 * eta + s9) * 1024
                if off >= 36*1024: a(f"ds_read_b128 v[{r}:{r+3}], v4 offset:{off-36*1024}")
                else: a(f"ds_read_b128 v[{r}:{r+3}], v3 offset:{off}")
    xread(0)
    for s9 in range(9):
        if s9 + 1 < 9:
            xread(s9 + 1)
            a(f"s_waitcnt lgkmcnt(8) vmcnt({16 - 2*s9})")
        else:
            a("s_waitcnt lgkmcnt(0) vmcnt(0)")
        for hl in range(2):
            for te in range(8):
                r = XF + (s9 % 2) * 32 + te * 4
                tb = TB + (s9 * 2 + hl) * 4
                d = AC + te * 4
                c = "0" if (s9 == 0 and hl == 0) else f"v[{d}:{d+3}]"
                a(f"v_mfma_f32_16x16x32_bf16 v[{d}:{d+3}], v[{r}:{r+3}], v[{tb}:{tb+3}], {c}")
    a("s_nop 7\ns_nop 3")
    a(f"s_cmp_lt_u32 s27, 18\ns_cselect_b32 s32, 1.0, -1.0")
    for T in range(4):
        for v in range(4):
            a(f"v_fma_f32 v{AC+T*8+v}, v{AC+T*8+4+v}, s32, v{AC+T*8+v}")
    for tau in range(2):
        for v in range(4):
            a(f"v_add_f32 v{48+tau*4+v}, v{AC+tau*8+v}, v{AC+(2+tau)*8+v}")
            a(f"v_sub_f32 v{56+tau*4+v}, v{AC+tau*8+v}, v{AC+(2+tau)*8+v}")
    split_pairs(a, 48, 8, 208, 212, 224)
    split_pairs(a, 56, 8, 216, 220, 224)
    a(f"""
s_mul_i32 s33, s25, 36
s_add_u32 s33, s33, s27
s_lshl_b32 s33, s33, 12
s_add_u32 s33, s33, {WS_Z}
buffer_store_dwordx4 v[208:211], v3, s[12:15], s33 offen sc1
buffer_store_dwordx4 v[212:215], v3, s[12:15], s33 offen offset:1024 sc1
buffer_store_dwordx4 v[216:219], v3, s[12:15], s33 offen offset:2048 sc1
buffer_store_dwordx4 v[220:223], v3, s[12:15], s33 offen offset:3072 sc1
s_cmp_lg_u32 s35, 0
s_cbranch_scc1 RD_end
s_cmp_ge_u32 s24, 2
s_cbranch_scc1 RD_end
s_mov_b32 s35, 1
s_add_u32 s27, s27, 4
s_branch RD_pass
""")
    a.label("RD_end")
    stamp(a)
    stamp_flush(a, swg, 24, 0x8300000)
    if end_hook: end_hook(a)
    else: a("s_endpgm")
```

```python
import sys; sys.path.insert(0, "gen")
from roles1 import *
import gemm, gemm5, pref2
from fft import *
from roles2 import *
from ri6 import role_ri6
from cf2 import role_cf2
from rd2 import role_rd2
def epi_hook(a, g):
    a("s_lshl_b32 s46, s2, 2\ns_add_u32 s46, s46, s24")
    r = 0
    for kind, ref, nb in [("ka", KA_W2, D*F*2), ("lab", "tab_ti", 18*36*1024), ("lab", "tab_cf", 69632), ("ka", KA_B2, D*2)]:
        if kind == "ka":
            a(f"s_load_dwordx2 s[4:5], s[0:1], {ref}\ns_waitcnt lgkmcnt(0)")
            srd(a, 8, 4, nb)
        else:
            table_srd(a, 8, ref, nb, 4)
        per = -(-nb // (1024 * 1024))
        a(f"s_mul_i32 s47, s46, {per*1024}")
        for j in range(per):
            d = g.AFR + (r % g.RA) * 4; r += 1
            a(f"buffer_load_dwordx4 v[{d}:{d+3}], v{g.VA}, s[8:11], s47 offen\ns_add_u32 s47, s47, 1024")
def build(out, prio=None, stamps=False, hprio=None, w2k0=False):
    gemm.STAMPS = stamps
    g = gemm5.G(4, 4, 4, 4)
    a = Asm()
    a(f"""; v16
; @launch kernel=k0_kernel grid=(512,1,1) block=(256,1,1) lds=75776
; @launch kernel=k1_kernel grid=(456,1,1) block=(256,1,1) lds=75776
; @launch kernel=k2_kernel grid=(410,1,1) block=(256,1,1) lds=73728
; @launch kernel=k3_kernel grid=(256,1,1) block=(384,1,1) lds=145408""")
    a('.amdgcn_target "amdgcn-amd-amdhsa--gfx950"\n.text')
    kernel_header(a, "k0_kernel")
    a("s_cmp_ge_u32 s2, 256\ns_cbranch_scc1 K0_pf")
    role_ln3(a, 2)
    a.label("K0_pf")
    a("s_sub_u32 s3, s2, 256\ns_cmp_ge_u32 s3, 64\ns_cbranch_scc1 K0_code")
    role_wt2(a, 3)
    a.label("K0_code")
    a("s_cmp_ge_u32 s2, 328\ns_cbranch_scc1 K0_st\ns_cmp_lg_u32 s2, 320\ns_cbranch_scc1 K0_end")
    pref2.touch_code(a, "k1_kernel", 65536, 0, 1, 4, 2)
    a("s_endpgm")
    a.label("K0_st")
    a("s_sub_u32 s3, s2, 328\ns_cmp_ge_u32 s3, 184\ns_cbranch_scc1 K0_end")
    mall_stream(a, 3, 184, [("ka", KA_W1, D*F*2), ("lab", "tab_tf", 36*18*1024), ("ka", KA_B1, F*2)] + ([("ka", KA_W2, D*F*2), ("lab", "tab_ti", 18*36*1024), ("lab", "tab_cf", 69632), ("ka", KA_B2, D*2)] if w2k0 else []))
    a.label("K0_end")
    a("s_endpgm")
    kernel_header(a, "k1_kernel")
    a("s_cmp_ge_u32 s2, 256\ns_cbranch_scc1 K1_b")
    gemm5.role_g1(a, 2, g, prio, None if w2k0 else epi_hook)
    a.label("K1_b")
    a("s_cmp_ge_u32 s2, 264\ns_cbranch_scc1 K1_rd")
    pref2.touch_code(a, "k1_kernel", 32768, 0, 1, 4, 2)
    a("s_endpgm")
    a.label("K1_rd")
    a("s_sub_u32 s3, s2, 264\ns_cmp_ge_u32 s3, 192\ns_cbranch_scc1 K1_end")
    role_rd2(a, 3, hprio)
    a.label("K1_end")
    a("s_endpgm")
    kernel_header(a, "k2_kernel")
    a("s_cmp_ge_u32 s2, 256\ns_cbranch_scc1 K2_b")
    gemm5.role_g2(a, 2, g, prio)
    a.label("K2_b")
    a("s_cmp_ge_u32 s2, 264\ns_cbranch_scc1 K2_cf")
    pref2.touch_code(a, "k2_kernel", 32768, 0, 1, 4, 2)
    a("s_endpgm")
    a.label("K2_cf")
    a("s_sub_u32 s3, s2, 264\ns_cmp_ge_u32 s3, 146\ns_cbranch_scc1 K2_end")
    role_cf2(a, 3, hprio)
    a.label("K2_end")
    a("s_endpgm")
    kernel_header(a, "k3_kernel")
    a("s_cmp_ge_u32 s2, 256\ns_cbranch_scc1 K3_end")
    a("s_cmp_ge_u32 s2, 8\ns_cbranch_scc1 K3_a\nv_cmp_gt_u32 vcc, 320, v0\ns_cbranch_vccnz K3_a\nv_and_b32 v8, 63, v0\nv_lshlrev_b32 v8, 1, v8")
    pref2.touch_code(a, "k3_kernel", 8192, 8, 9, 4, 10)
    a("v_add_u32 v10, 64, v10\nglobal_load_dword v9, v10, s[4:5]")
    a.label("K3_a")
    role_ri6(a, 2)
    a.label("K3_end")
    a("s_endpgm")
    a(".fill 16384, 4, 0xbf800000")
    a('.section .rodata,"a"\n.p2align 6')
    a(kernel_desc("k0_kernel", 64, 40))
    a(kernel_desc("k1_kernel", 256, 100))
    a(kernel_desc("k2_kernel", 256, 100))
    a(kernel_desc("k3_kernel", 256, 100))
    emit_bytes(a, "tab_cf", cf_tables())
    emit_big_tables(a)
    open(out, "w").write(a.text())
gemm5.PK = True
build("v30_pk.s", prio=2, w2k0=True)
build("v30_pks.s", prio=2, w2k0=True, stamps=True)
gemm5.PK = False
build("v30.s", prio=2, w2k0=True)
```

```python
from asmlib import *
from roles1 import *
import gemm
from gemm import Cnt, stamp, stamp_flush
from gemm6 import G, SLAB, STG

def role_g2k(a, swg, g, prio=None):
    stamp(a)
    MT, PD, LA, RA, NR = g.MT, g.PD, g.LA, g.RA, g.NRING
    L, T0, T1, T2 = g.VT, g.AFR, g.AFR + 1, g.AFR + 2
    a(f"""
s_load_dwordx2 s[4:5], s[0:1], {KA_W2}
s_load_dwordx2 s[6:7], s[0:1], {KA_WS}
v_lshrrev_b32 v{T0}, 6, v0
v_and_b32 v{L}, 63, v0
v_readfirstlane_b32 s24, v{T0}
s_and_b32 s25, s{swg}, 7             ; xcd
s_lshr_b32 s26, s{swg}, 3            ; j 0..31
s_lshr_b32 s46, s25, 1               ; kq
s_and_b32 s27, s25, 1
s_lshl_b32 s27, s27, 3
s_and_b32 s28, s26, 7
s_add_u32 s27, s27, s28              ; Mt2 (0..15)
s_lshr_b32 s28, s26, 3               ; Nt
s_and_b32 s47, s24, 1                ; i_m
s_lshr_b32 s48, s24, 1               ; j_k
""")
    if prio is not None: a(f"s_setprio {prio}")
    a("s_lshl_b32 s35, s24, 6")
    for j in range(5):
        a(f"v_add_u32 v{T0}, s35, v{L}")
        if j: a(f"v_add_u32 v{T0}, {256*j}, v{T0}")
        a(f"v_mul_u32_u24 v{T1}, 3641, v{T0}\nv_lshrrev_b32 v{T1}, 16, v{T1}")
        a(f"v_mul_u32_u24 v{T2}, 18, v{T1}\nv_sub_u32 v{T0}, v{T0}, v{T2}")
        a(f"v_lshrrev_b32 v{T2}, 5, v{T1}\nv_mul_u32_u24 v{T2}, {576-32}, v{T2}\nv_add_u32 v{T1}, v{T1}, v{T2}")
        a(f"v_mul_u32_u24 v{T1}, 1152, v{T1}")
        a(f"v_lshl_add_u32 v{g.VD+j}, v{T0}, 4, v{T1}")
    a(f"""
s_lshl_b32 s34, s24, 10
v_lshrrev_b32 v{T0}, 2, v{L}
v_mul_u32_u24 v{T0}, 288, v{T0}
v_and_b32 v{T1}, 3, v{L}
v_lshl_add_u32 v{g.VL}, v{T1}, 3, v{T0}
s_mul_i32 s29, s48, {SLAB}
v_add_u32 v{g.VL}, s29, v{g.VL}
v_add_u32 v{g.VL+1}, {2*STG}, v{g.VL}
s_lshl_b32 s30, s27, 2
s_lshl_b32 s29, s47, 1
s_add_u32 s30, s30, s29              ; rt0
s_mul_i32 s40, s30, 147456
s_lshl_b32 s29, s46, 1
s_add_u32 s29, s29, s48              ; ks
s_mul_i32 s29, s29, {18*1024}
s_add_u32 s40, s40, s29
s_add_u32 s40, s40, {WS_H}
""")
    for mt in range(1, MT): a(f"s_add_u32 s{40+mt}, s40, {((mt//2) + 64*(mt%2))*147456}")
    a(f"""
v_lshlrev_b32 v{g.VA}, 4, v{L}
v_lshlrev_b32 v{L+1}, 3, v{L}
s_mul_i32 s32, s28, 288
s_mul_i32 s29, s46, {1152*1152}
s_add_u32 s32, s32, s29
s_mov_b32 s45, {(1<<32)//18432 + 1}
s_waitcnt lgkmcnt(0)
""")
    srd(a, 8, 4, D*F*2)
    srd(a, 12, 6, WS_BYTES)
    NS = 18; NT = NS * 9
    vm = Cnt(a, "vmcnt", 63); lg = Cnt(a, "lgkmcnt", 15)
    dma_last = {}; dma_done = set(); act_last = {}; act_cnt = {}; tr_last = {}
    def w_off(s):
        if s < 16: return (144 * (s // 4) + 32 * (s % 4)) * 1152
        return (128 + 288 * (s - 16)) * 1152
    def dma_ops(s):
        out = []; slot = s % NR
        for j in (4, 0, 1, 2, 3):
            def f(j=j):
                if j == 4:
                    if s == 16:
                        for jj in range(5):
                            a(f"v_mul_hi_u32 v{L}, v{g.VD+jj}, s45\nv_and_b32 v{L}, 1, v{L}\nv_mul_u32_u24 v{L}, {128*1152}, v{L}\nv_add_u32 v{g.VD+jj}, v{g.VD+jj}, v{L}")
                    a(f"s_add_u32 s33, s32, {w_off(s)}")
                    lab = a.uid("dsk")
                    a(f"s_cmp_ge_u32 s24, 2\ns_cbranch_scc1 {lab}")
                a(f"s_add_u32 m0, s34, {slot*STG + j*4096}\ns_nop 0")
                a(f"buffer_load_dwordx4 v{g.VD+j}, s[8:11], s33 offen lds")
                if j == 4: a.label(lab)
                else: dma_last[s] = vm.issue()
                if j == 3: dma_done.add(s)
            out.append(f)
        return out
    def act_ops(s):
        out = []
        for mt in range(MT):
            def f(mt=mt):
                r = g.ACT + ((s % (PD + 1)) * MT + mt) * 4
                sa = 40 + mt
                if s < 16:
                    a(f"buffer_load_dwordx4 v[{r}:{r+3}], v{g.VA}, s[12:15], s{sa} offen offset:{(s % 4) * 1024}")
                    if s % 4 == 3: a(f"s_add_u32 s{sa}, s{sa}, 4608")
                    x = vm.issue()
                else:
                    jj = s - 16
                    for i in range(2):
                        a(f"s_sub_u32 s44, s{sa}, {4*4608 - ((2*jj+i)*4608 + 4096)}")
                        a(f"buffer_load_dwordx2 v[{r+2*i}:{r+2*i+1}], v{L+1}, s[12:15], s44 offen")
                        x = vm.issue()
                act_last[s] = x; act_cnt[s] = act_cnt.get(s, 0) + 1
            out.append(f)
        return out
    def tr_read(t):
        s, nt = divmod(t, 9)
        slot = s % NR
        r = g.AFR + (t % RA) * 4
        off = (slot % 2) * STG + nt * 32
        vl = g.VL + slot // 2
        a(f"ds_read_b64_tr_b16 v[{r}:{r+1}], v{vl} offset:{off}"); lg.issue()
        a(f"ds_read_b64_tr_b16 v[{r+2}:{r+3}], v{vl} offset:{off + 16*288}"); tr_last[t] = lg.issue()
    for f in dma_ops(0) + act_ops(0) + dma_ops(1) + act_ops(1): f()
    queue = dma_ops(2) + act_ops(2) + dma_ops(3) + act_ops(3)
    for s in range(4, PD + 1): queue += act_ops(s)
    next_act = PD + 1
    stamp(a)
    vm.wait(dma_last[0])
    a("s_barrier")
    stamp(a)
    next_read = 0; avail = 0
    def pump(upto):
        nonlocal next_read
        while next_read <= upto and next_read < NT and (next_read // 9) <= avail:
            tr_read(next_read); next_read += 1
    pump(LA - 1)
    for t in range(NT):
        s, nt = divmod(t, 9)
        if nt == 0:
            if s >= 1 and next_act < NS:
                queue += act_ops(next_act); next_act += 1
            while act_cnt.get(s, 0) < MT: queue.pop(0)()
            vm.wait(act_last[s])
        lg.wait(tr_last[t])
        ra = g.AFR + (t % RA) * 4
        for mt in range(MT):
            rb = g.ACT + ((s % (PD + 1)) * MT + mt) * 4
            d = g.acc(mt, nt)
            c = "0" if s == 0 else f"v[{d}:{d+3}]"
            a(f"v_mfma_f32_16x16x32_bf16 v[{d}:{d+3}], v[{ra}:{ra+3}], v[{rb}:{rb+3}], {c}")
            if mt == 1 and queue: queue.pop(0)()
            if mt == 3 and len(queue) > 3: queue.pop(0)()
        if nt == 9 - LA + 1 and s + 1 < NS:
            while (s + 1) not in dma_done: queue.pop(0)()
            n = vm.need(dma_last[s + 1])
            lg.done = lg.issued
            a("s_waitcnt lgkmcnt(0)" + (f" vmcnt({n})" if n is not None else ""))
            a("s_barrier")
            if s % 4 == 3: stamp(a)
            avail = s + 1
            if s + NR < NS: queue += dma_ops(s + NR)
        pump(t + LA)
    assert not queue
    a("s_nop 7\ns_nop 3")
    stamp(a)
    if prio is not None: a("s_setprio 0")
    a(f"""
s_barrier
s_mul_i32 s29, s24, 18432
v_add_u32 v{T0}, s29, v{g.VA}
s_xor_b32 s29, s24, 2
s_mul_i32 s29, s29, 18432
v_add_u32 v{T1}, s29, v{g.VA}
s_add_u32 s37, s30, s48
s_mul_i32 s37, s37, 36
s_mul_i32 s38, s28, 9
s_add_u32 s37, s37, s38
s_lshl_b32 s37, s37, 2
s_add_u32 s37, s37, s46
s_lshl_b32 s37, s37, 10
s_add_u32 s37, s37, {WS_P}
s_cmp_eq_u32 s48, 1
s_cbranch_scc1 G2K_hi
""")
    def fin(keep):
        send = 1 - keep
        for x in range(2):
            for nt in range(9):
                r = g.acc(2*send + x, nt)
                a(f"ds_write_b128 v{T0}, v[{r}:{r+3}] offset:{(x*9+nt)*1024}")
        a("s_waitcnt lgkmcnt(0)\ns_barrier")
        for x in range(2):
            for nt in range(9):
                r = g.acc(2*send + x, nt)
                a(f"ds_read_b128 v[{r}:{r+3}], v{T1} offset:{(x*9+nt)*1024}")
        a("s_waitcnt lgkmcnt(0)")
        k = 0
        for nt in range(9):
            o = g.ACT + (k % 8) * 4; k += 1
            for x in range(2):
                r = g.acc(2*keep + x, nt); q = g.acc(2*send + x, nt)
                for v in range(4): a(f"v_add_f32 v{r+v}, v{r+v}, v{q+v}")
                a(f"v_cvt_pk_bf16_f32 v{o+2*x}, v{r}, v{r+1}\nv_cvt_pk_bf16_f32 v{o+2*x+1}, v{r+2}, v{r+3}")
            a(f"s_add_u32 s38, s37, {nt*4096}")
            a(f"buffer_store_dwordx4 v[{o}:{o+3}], v{g.VA}, s[12:15], s38 offen sc1")
    fin(0)
    a("s_branch G2K_done")
    a.label("G2K_hi")
    fin(1)
    a.label("G2K_done")
    stamp(a)
    stamp_flush(a, swg, 24, 0x8100000)
    a("s_endpgm")
M_ = (1<<32)//18432 + 1
for sub in range(3):
    for prow in range(32):
        for o in range(18):
            v = (prow + sub*576)*1152 + o*16
            assert (((v*M_) >> 32) & 1) == (1 if prow >= 16 else 0)
```

```python
from asmlib import *
from roles1 import *
import gemm
from gemm import Cnt, stamp, stamp_flush, GELU_C0, GELU_C1, gelu4

SLAB = 9216
STG = 2 * SLAB
ST_FLAG = " sc1"
PK = False

class G:
    def __init__(s, NW=4, MT=4, PD=4, LA=4, NRING=4, second=False):
        s.NW, s.MT, s.PD, s.LA, s.NRING = NW, MT, PD, LA, NRING
        s.RA = LA + 1
        s.ACC = 0
        s.ACT = MT * 36
        s.AFR = s.ACT + (PD + 1) * MT * 4
        s.VA = s.AFR + s.RA * 4
        s.ND = -(-18 // NW)
        s.NOPT = 18 - NW * (s.ND - 1)
        s.VD = s.VA + 1
        s.VL = s.VD + s.ND
        s.VT = s.VL + 2
        s.NREG = s.VT + 2
        s.LDS = NRING * STG
    def acc(s, mt, nt): return s.ACC + (mt * 9 + nt) * 4

def gemm_core(a, g, cfg):
    NS = 18; NSTG = 9; NT = NS * 9
    stamp = (lambda a: None) if cfg.get('nostamp') else gemm.stamp
    PD, LA, RA, MT, NR = g.PD, g.LA, g.RA, g.MT, g.NRING
    vm = Cnt(a, "vmcnt", 63); lg = Cnt(a, "lgkmcnt", 15)
    wsrd = cfg["w_srd"]
    dma_last = {}; act_last = {}; tr_last = {}; act_cnt = {}; dma_done = set()
    def dma_ops(st):
        out = []
        slot = st % NR
        order = [g.ND - 1] + list(range(g.ND - 1))
        for j in order:
            def f(j=j):
                opt = (j == g.ND - 1) and g.NOPT < g.NW
                if j == order[0]:
                    if "pre_dma" in cfg: cfg["pre_dma"](st)
                    a(f"s_add_u32 s{cfg['s_w']}, s{cfg['s_wbase']}, {cfg['w_off'](st)}")
                if opt:
                    lab = a.uid("dsk")
                    a(f"s_cmp_ge_u32 s{cfg['s_wave']}, {g.NOPT}\ns_cbranch_scc1 {lab}")
                a(f"s_add_u32 m0, s{cfg['s_m0']}, {slot * STG + j * g.NW * 1024}")
                a("s_nop 0")
                a(f"buffer_load_dwordx4 v{g.VD+j}, s[{wsrd}:{wsrd+3}], s{cfg['s_w']} offen lds")
                if opt: a.label(lab)
                else: dma_last[st] = vm.issue()
                if j == order[-1]: dma_done.add(st)
            out.append(f)
        return out
    def act_ops(s):
        out = []
        for mt in range(MT):
            def f(mt=mt):
                r = g.ACT + ((s % (PD + 1)) * MT + mt) * 4
                act_last[s] = cfg["act"](a, s, mt, r, vm)
                act_cnt[s] = act_cnt.get(s, 0) + 1
            out.append(f)
        return out
    def tr_read(t):
        s, nt = divmod(t, 9)
        st, j = divmod(s, 2)
        slot = st % NR
        r = g.AFR + (t % RA) * 4
        off = (slot % 2) * STG + j * SLAB + nt * 32
        vl = g.VL + slot // 2
        a(f"ds_read_b64_tr_b16 v[{r}:{r+1}], v{vl} offset:{off}")
        lg.issue()
        a(f"ds_read_b64_tr_b16 v[{r+2}:{r+3}], v{vl} offset:{off + cfg['tr2']}")
        tr_last[t] = lg.issue()
    for f in dma_ops(0): f()
    if "pre_act" in cfg: cfg["pre_act"](vm)
    if "wait_hook" in cfg:
        for st_ in range(1, NR):
            for f in dma_ops(st_): f()
        cfg["wait_hook"](vm)
        for s in range(0, 3):
            for f in act_ops(s): f()
        queue = []
        for s in range(3, PD + 1): queue += act_ops(s)
    else:
        for f in act_ops(0): f()
        for f in act_ops(1): f()
        for f in dma_ops(1): f()
        queue = act_ops(2) + dma_ops(2) + act_ops(3) + dma_ops(3)
        for s in range(4, PD + 1): queue += act_ops(s)
    next_act = max(PD + 1, 4)
    if "prologue_extra" in cfg: cfg["prologue_extra"](vm)
    stamp(a)
    vm.wait(dma_last[0])
    a("s_barrier")
    stamp(a)
    next_read = 0; avail = 0
    def pump_reads(upto):
        nonlocal next_read
        while next_read <= upto and next_read < NT and (next_read // 18) <= avail:
            tr_read(next_read); next_read += 1
    pump_reads(LA - 1)
    for t in range(NT):
        s, nt = divmod(t, 9)
        if nt == 0:
            if s >= 1 and next_act < NS:
                queue += act_ops(next_act); next_act += 1
            while act_cnt.get(s, 0) < MT: queue.pop(0)()
            vm.wait(act_last[s])
        lg.wait(tr_last[t])
        ra = g.AFR + (t % RA) * 4
        for mt in range(MT):
            rb = g.ACT + ((s % (PD + 1)) * MT + mt) * 4
            d = g.acc(mt, nt)
            c = cfg["first_c"](mt, nt) if s == 0 else f"v[{d}:{d+3}]"
            a(f"v_mfma_f32_16x16x32_bf16 v[{d}:{d+3}], v[{ra}:{ra+3}], v[{rb}:{rb+3}], {c}")
            if mt == max(MT // 2 - 1, 0) and queue: queue.pop(0)()
            if mt == MT - 1 and len(queue) > 6: queue.pop(0)()
        st = t // 18
        if t == 18 * (st + 1) - LA + 1 and st + 1 < NSTG:
            while (st + 1) not in dma_done: queue.pop(0)()
            n = vm.need(dma_last[st + 1])
            lg.done = lg.issued
            a("s_waitcnt lgkmcnt(0)" + (f" vmcnt({n})" if n is not None else ""))
            a("s_barrier")
            if st % 2 == 1: stamp(a)
            avail = st + 1
            if st + NR < NSTG: queue += dma_ops(st + NR)
        pump_reads(t + LA)
    assert not queue
    a("s_nop 7\ns_nop 3")
    stamp(a)
    return vm

def setup_dma(a, g, vlane, swave, ldw, kind, t0, t1, t2, s_m0, stmp):
    a(f"s_lshl_b32 s{stmp}, s{swave}, 6")
    for j in range(g.ND):
        a(f"v_add_u32 v{t0}, s{stmp}, v{vlane}")
        if j: a(f"v_add_u32 v{t0}, {64*g.NW*j}, v{t0}")
        a(f"v_mul_u32_u24 v{t1}, 3641, v{t0}\nv_lshrrev_b32 v{t1}, 16, v{t1}")
        a(f"v_mul_u32_u24 v{t2}, 18, v{t1}\nv_sub_u32 v{t0}, v{t0}, v{t2}")
        if kind == "nat":
            a(f"v_lshrrev_b32 v{t2}, 1, v{t1}\nv_xor_b32 v{t2}, v{t2}, v{t1}\nv_and_b32 v{t2}, 4, v{t2}")
            a(f"v_mul_u32_u24 v{t2}, 3, v{t2}\nv_xor_b32 v{t1}, v{t1}, v{t2}")
        a(f"v_mul_u32_u24 v{t1}, {ldw}, v{t1}")
        a(f"v_lshl_add_u32 v{g.VD+j}, v{t0}, 4, v{t1}")
    a(f"s_lshl_b32 s{s_m0}, s{swave}, 10")

def setup_lds_read(a, g, vlane, kind, t0, t1):
    a(f"v_lshrrev_b32 v{t0}, 2, v{vlane}")
    if kind == "nat":
        a(f"v_and_b32 v{t1}, 8, v{t0}\nv_add_u32 v{t0}, v{t0}, v{t1}")
    a(f"v_mul_u32_u24 v{t0}, 288, v{t0}")
    a(f"v_and_b32 v{t1}, 3, v{vlane}\nv_lshl_add_u32 v{g.VL}, v{t1}, 3, v{t0}")
    a(f"v_add_u32 v{g.VL+1}, {2*STG}, v{g.VL}")

def store_tilegroups(a, g, mt, sbase, s2, v8, conv, k0, nbuf, tsz):
    k = k0
    for gi in range(5):
        t = g.ACT + (k % nbuf) * tsz; k += 1
        o = t + tsz - 4
        for x in range(2 if gi < 4 else 1):
            r = g.acc(mt, 2*gi + x)
            conv(r, t)
            a(f"v_cvt_pk_bf16_f32 v{o+2*x}, v{r}, v{r+1}\nv_cvt_pk_bf16_f32 v{o+2*x+1}, v{r+2}, v{r+3}")
        if gi < 4: a(f"buffer_store_dwordx4 v[{o}:{o+3}], v{g.VA}, s[12:15], s{sbase} offen offset:{gi*1024}{ST_FLAG}")
        else: a(f"buffer_store_dwordx2 v[{o}:{o+1}], v{v8}, s[12:15], s{s2} offen{ST_FLAG}")
    return k

def role_g1(a, swg, g, prio=None, epi_hook=None, wait_hook=None, vtid=0):
    stamp(a)
    MT = g.MT
    L, T0, T1, T2 = g.VT, g.AFR, g.AFR + 1, g.AFR + 2
    a(f"""
s_load_dwordx2 s[4:5], s[0:1], {KA_W1}
s_load_dwordx2 s[6:7], s[0:1], {KA_WS}
s_load_dwordx2 s[16:17], s[0:1], {KA_B1}
v_lshrrev_b32 v{T0}, 6, v{vtid}
v_and_b32 v{L}, 63, v{vtid}
v_readfirstlane_b32 s24, v{T0}       ; wave
s_and_b32 s25, s{swg}, 7             ; xcd
s_lshr_b32 s26, s{swg}, 3            ; j
s_and_b32 s27, s25, 1
s_lshl_b32 s27, s27, 2
s_and_b32 s28, s26, 3
s_add_u32 s27, s27, s28              ; Mt
s_lshr_b32 s28, s25, 1
s_lshl_b32 s28, s28, 3
s_lshr_b32 s29, s26, 2
s_add_u32 s28, s28, s29              ; Nt
""")
    if prio is not None: a(f"s_setprio {prio}")
    setup_dma(a, g, L, 24, 9216, "nat", T0, T1, T2, 34, 35)
    setup_lds_read(a, g, L, "nat", T0, T1)
    a(f"""
s_lshl_b32 s30, s27, 3
s_mul_i32 s29, s24, {MT//2}
s_add_u32 s30, s30, s29              ; rt0
s_mul_i32 s40, s30, 18432
s_add_u32 s40, s40, {WS_Y}
""")
    for mt in range(1, MT): a(f"s_add_u32 s{40+mt}, s40, {((mt//2) + 64*(mt%2))*18432}")
    a(f"""
v_lshlrev_b32 v{g.VA}, 4, v{L}
s_mul_i32 s32, s28, 288
v_lshrrev_b32 v{L+1}, 4, v{L}
v_lshlrev_b32 v{L+1}, 3, v{L+1}
s_waitcnt lgkmcnt(0)
""")
    srd(a, 8, 4, D*F*2)
    srd(a, 12, 6, WS_BYTES)
    srd(a, 20, 16, F*2)
    bias = []
    def pre_act(vm):
        for nt in range(9):
            r = g.acc(MT-2, nt)
            a(f"buffer_load_dwordx2 v[{r}:{r+1}], v{L+1}, s[20:23], s32 offen offset:{nt*32}")
            bias.append(vm.issue())
    def pro(vm):
        vm.wait(bias[-1])
        for nt in range(9):
            r = g.acc(MT-2, nt); d = g.acc(MT-1, nt)
            a(f"v_lshlrev_b32 v{d}, 16, v{r}\nv_and_b32 v{d+1}, 0xffff0000, v{r}\nv_lshlrev_b32 v{d+2}, 16, v{r+1}\nv_and_b32 v{d+3}, 0xffff0000, v{r+1}")
    def act(a, s, mt, r, vm):
        sa = 40 + mt
        a(f"buffer_load_dwordx4 v[{r}:{r+3}], v{g.VA}, s[12:15], s{sa} offen offset:{(s % 4) * 1024}{' sc1' if wait_hook else ''}")
        if s % 4 == 3: a(f"s_add_u32 s{sa}, s{sa}, 4096")
        return vm.issue()
    cfg = dict(w_srd=8, s_w=33, s_wbase=32, w_off=lambda st: st*64*9216, tr2=8*288, s_wave=24, act=act,
               first_c=lambda mt, nt: f"v[{g.acc(MT-1,nt)}:{g.acc(MT-1,nt)+3}]", s_m0=34, pre_act=pre_act, prologue_extra=pro)
    if wait_hook: cfg["wait_hook"] = lambda vm: wait_hook(a, g, vm)
    gemm_core(a, g, cfg)
    if prio is not None: a("s_setprio 0")
    a(f"""
v_mov_b32 v{L}, {f32hex(GELU_C0)}
v_lshrrev_b32 v{L+1}, 1, v{g.VA}
s_mov_b32 s36, {f32hex(GELU_C1)}
s_mul_i32 s37, s30, 147456
s_add_u32 s37, s37, {WS_H}
s_mul_i32 s38, s28, 4608
s_add_u32 s37, s37, s38
""")
    nbuf = ((g.PD + 1) * MT * 4) // 8
    if epi_hook: epi_hook(a, g)
    k = 0
    C0P = g.AFR + 4
    a(f"v_mov_b32 v{C0P}, v{L}\nv_mov_b32 v{C0P+1}, v{L}\ns_mov_b32 s50, s36\ns_mov_b32 s51, s36\ns_mov_b32 s52, 1.0\ns_mov_b32 s53, 1.0")
    gl = (lambda r, t: gemm.gelu4pk(a, r, t, C0P, 50, 52)) if PK else (lambda r, t: gelu4(a, r, t, L, 36))
    for mt in range(MT):
        a(f"s_add_u32 s46, s37, {((mt//2) + 64*(mt%2))*147456}")
        a("s_add_u32 s39, s46, 4096")
        k = store_tilegroups(a, g, mt, 46, 39, L+1, gl, k, nbuf, 8)
    stamp(a)
    if gemm.STAMPS: a("s_and_b32 s24, s24, 3")
    stamp_flush(a, swg, 24, 0x8000000)
    a("s_endpgm")

def role_g2(a, swg, g, prio=None):
    stamp(a)
    MT = g.MT
    L, T0, T1, T2 = g.VT, g.AFR, g.AFR + 1, g.AFR + 2
    a(f"""
s_load_dwordx2 s[4:5], s[0:1], {KA_W2}
s_load_dwordx2 s[6:7], s[0:1], {KA_WS}
v_lshrrev_b32 v{T0}, 6, v0
v_and_b32 v{L}, 63, v0
v_readfirstlane_b32 s24, v{T0}
s_and_b32 s25, s{swg}, 7             ; ks
s_lshr_b32 s26, s{swg}, 3
s_and_b32 s27, s26, 7                ; Mt
s_lshr_b32 s28, s26, 3               ; Nt
""")
    if prio is not None: a(f"s_setprio {prio}")
    setup_dma(a, g, L, 24, 1152, "perm", T0, T1, T2, 34, 35)
    setup_lds_read(a, g, L, "perm", T0, T1)
    a(f"""
s_lshl_b32 s30, s27, 3
s_mul_i32 s29, s24, {MT//2}
s_add_u32 s30, s30, s29
s_mul_i32 s40, s30, 147456
s_mul_i32 s29, s25, {18*1024}
s_add_u32 s40, s40, s29
s_add_u32 s40, s40, {WS_H}
""")
    for mt in range(1, MT): a(f"s_add_u32 s{40+mt}, s40, {((mt//2) + 64*(mt%2))*147456}")
    a(f"""
v_lshlrev_b32 v{g.VA}, 4, v{L}
v_lshlrev_b32 v{L+1}, 3, v{L}
s_mul_i32 s32, s28, 288
s_mul_i32 s29, s25, {576*1152}
s_add_u32 s32, s32, s29
s_mov_b32 s45, {(1<<32)//18432 + 1}
s_waitcnt lgkmcnt(0)
""")
    srd(a, 8, 4, D*F*2)
    srd(a, 12, 6, WS_BYTES)
    def act(a, s, mt, r, vm):
        sa = 40 + mt
        if s < 16:
            a(f"buffer_load_dwordx4 v[{r}:{r+3}], v{g.VA}, s[12:15], s{sa} offen offset:{(s % 4) * 1024}")
            if s % 4 == 3: a(f"s_add_u32 s{sa}, s{sa}, 4608")
            return vm.issue()
        j = s - 16
        for i in range(2):
            a(f"s_sub_u32 s44, s{sa}, {4*4608 - ((2*j+i)*4608 + 4096)}")
            a(f"buffer_load_dwordx2 v[{r+2*i}:{r+2*i+1}], v{L+1}, s[12:15], s44 offen")
            x = vm.issue()
        return x
    def w_off(st):
        if st < 8: return (144 * (st // 2) + 64 * (st % 2)) * 1152
        return 128 * 1152
    def pre_dma(st):
        if st == 8:
            for j in range(g.ND):
                a(f"v_mul_hi_u32 v{L}, v{g.VD+j}, s45")
                a(f"v_mul_u32_u24 v{L}, {128*1152}, v{L}")
                a(f"v_add_u32 v{g.VD+j}, v{g.VD+j}, v{L}")
    cfg = dict(w_srd=8, s_w=33, s_wbase=32, w_off=w_off, pre_dma=pre_dma, tr2=16*288, s_wave=24, act=act,
               first_c=lambda mt, nt: "0", s_m0=34)
    gemm_core(a, g, cfg)
    if prio is not None: a("s_setprio 0")
    a(f"""
s_mul_i32 s37, s30, 36
s_mul_i32 s38, s28, 9
s_add_u32 s37, s37, s38
s_lshl_b32 s37, s37, 3
s_add_u32 s37, s37, s25
s_lshl_b32 s37, s37, 10
s_add_u32 s37, s37, {WS_P}
""")
    k = 0
    for rp in range(MT // 2):
        for nt in range(9):
            a(f"s_add_u32 s38, s37, {(rp*36 + nt)*8192}")
            o = g.ACT + (k % 8) * 4; k += 1
            for x in range(2):
                r = g.acc(2*rp + x, nt)
                a(f"v_cvt_pk_bf16_f32 v{o+2*x}, v{r}, v{r+1}\nv_cvt_pk_bf16_f32 v{o+2*x+1}, v{r+2}, v{r+3}")
            a(f"buffer_store_dwordx4 v[{o}:{o+3}], v{g.VA}, s[12:15], s38 offen{ST_FLAG}")
    stamp(a)
    if gemm.STAMPS: a("s_and_b32 s24, s24, 3")
    stamp_flush(a, swg, 24, 0x8100000)
    a("s_endpgm")
M_ = (1<<32)//18432 + 1
for prow in range(80):
    for o in range(18):
        v = prow*1152 + o*16
        assert (v*M_) >> 32 == prow // 16
```

```python
from asmlib import *
from roles1 import *
from fft import table_srd
import numpy as np
import gemm
from gemm import stamp, stamp_flush, Cnt

def role_ri8(a, swg, nks=4):
    stamp(a)
    a(f"""
s_load_dwordx2 s[6:7], s[0:1], {KA_WS}
s_load_dwordx2 s[16:17], s[0:1], {KA_X}
s_load_dwordx2 s[18:19], s[0:1], {KA_OUT}
s_load_dwordx2 s[44:45], s[0:1], {KA_B2}
v_lshrrev_b32 v1, 6, v0
v_and_b32 v2, 63, v0
v_readfirstlane_b32 s24, v1
s_and_b32 s25, s{swg}, 63            ; rt
s_lshr_b32 s26, s{swg}, 6            ; ng
s_mul_i32 s27, s26, 5
s_cmp_eq_u32 s26, 3
s_cselect_b32 s47, 1, 0
s_sub_u32 s27, s27, s47              ; base: 0,5,10,14
s_add_u32 s27, s27, s24              ; nt
s_cmp_lt_u32 s26, 2
s_cselect_b32 s47, 5, 4              ; count
v_lshlrev_b32 v3, 4, v2
s_mul_i32 s28, s25, {18*1024}
s_add_u32 s28, s28, {WS_V}
s_mul_i32 s30, s27, {36*1024}
s_mul_i32 s29, s24, 3072
s_add_u32 s28, s28, s29
""")
    table_srd(a, 8, "tab_ti", 18*36*1024, 4)
    a("s_waitcnt lgkmcnt(0)")
    srd(a, 12, 6, WS_BYTES)
    vm = Cnt(a, "vmcnt", 63)
    def vdma(blk):
        a(f"s_add_u32 m0, s29, {blk*18*1024}\ns_add_u32 s33, s28, {blk*64*18*1024}")
        for i in range(3):
            a(f"buffer_load_dwordx4 v3, s[12:15], s33 offen offset:{i*1024} lds"); x = vm.issue()
        return x
    TB = 64
    tid = {}
    def tload(i):
        if i % 4 == 0 or i == 18: a(f"s_add_u32 s32, s30, {(i//4)*4096}")
        a(f"buffer_load_dwordx4 v[{TB+4*i}:{TB+4*i+3}], v3, s[8:11], s32 offen offset:{(i%4)*1024}")
        tid[i] = vm.issue()
    a("s_cmp_lt_u32 s24, s47\ns_cbranch_scc1 RI_active")
    for blk in (0, 2, 1, 3):
        a(f"s_add_u32 m0, s29, {blk*18*1024}\ns_add_u32 s33, s28, {blk*64*18*1024}")
        for i in range(3): a(f"buffer_load_dwordx4 v3, s[12:15], s33 offen offset:{i*1024} lds")
    a("s_waitcnt vmcnt(6)\ns_barrier\ns_waitcnt vmcnt(0)\ns_barrier\ns_endpgm")
    a.label("RI_active")
    vdma(0); v0id = vdma(2)
    for i in range(18): tload(i)
    vdma(1); v1id = vdma(3)
    srd(a, 20, 16, S*D*2)
    srd(a, 48, 18, S*D*2)
    srd(a, 52, 44, D*2)
    XB, BB = 240, 248
    a(f"""
s_mul_i32 s31, s25, 36
s_add_u32 s31, s31, s27
s_lshl_b32 s31, s31, 12
s_add_u32 s31, s31, {WS_P}
s_mul_i32 s42, s24, 14336
s_add_u32 s42, s42, 73728
v_and_b32 v6, 15, v2
v_lshrrev_b32 v7, 3, v6
v_lshlrev_b32 v7, 4, v7
v_and_b32 v6, 7, v6
v_add_u32 v6, v6, v7
s_and_b32 s32, s25, 1
s_lshl_b32 s32, s32, 3
v_add_u32 v6, s32, v6
v_lshlrev_b32 v13, 7, v6
v_mul_u32_u24 v6, {32*1152}, v6
v_lshrrev_b32 v7, 4, v2
v_lshlrev_b32 v7, 3, v7
v_add_u32 v6, v6, v7
s_lshr_b32 s40, s25, 1
s_mul_i32 s40, s40, 1152
s_lshl_b32 s46, s27, 5
s_add_u32 s40, s40, s46
s_add_u32 s41, s40, {1024*1152}
v_add_u32 v4, {36*1024}, v3
""")
    queue = [(lambda i=i: tload(i)) for i in range(18, 36)]
    def pload(f):
        eta, ks = divmod(f, nks)
        a(f"s_add_u32 s43, s31, {ks*1024 + 18*4096*eta}")
        if f < 14: a(f"s_add_u32 m0, s42, {f*1024}\ns_nop 0\nbuffer_load_dwordx4 v3, s[12:15], s43 offen lds")
        else: a(f"buffer_load_dwordx4 v[{48+4*(f-14)}:{51+4*(f-14)}], v3, s[12:15], s43 offen")
        vm.issue()
    queue += [(lambda f=f: pload(f)) for f in range(2*nks)]
    def xl():
        for o in range(4):
            rho, eta = divmod(o, 2)
            a(f"buffer_load_dwordx2 v[{XB+2*o}:{XB+2*o+1}], v6, s[20:23], s{41 if rho else 40} offen offset:{576*eta}"); vm.issue()
        for eta in range(2):
            a(f"buffer_load_dwordx2 v[{BB+2*eta}:{BB+2*eta+1}], v7, s[52:55], s46 offen offset:{576*eta}"); vm.issue()
        a(f"s_lshr_b32 s43, s25, 1\ns_lshl_b32 s43, s43, 2\ns_add_u32 s43, s43, {WS_V288}\ns_add_u32 s34, s43, 4096")
        a("buffer_load_dword v14, v13, s[12:15], s43 offen\nbuffer_load_dword v15, v13, s[12:15], s34 offen"); vm.issue(); vm.issue()
    queue.append(xl)
    stamp(a)
    vm.wait(v0id)
    a("s_barrier")
    stamp(a)
    AC, BF = 16, 208
    steps = [(par, s) for par in range(2) for s in range(9)]
    def vread(idx):
        par, s = steps[idx]
        for pi in range(2):
            for hl in range(2):
                r = BF + (idx % 2) * 16 + (pi*2+hl) * 4
                off = ((pi*2+par) * 18 + s*2 + hl) * 1024
                if off >= 36*1024: a(f"ds_read_b128 v[{r}:{r+3}], v4 offset:{off-36*1024}")
                else: a(f"ds_read_b128 v[{r}:{r+3}], v3 offset:{off}")
    vread(0)
    for idx, (par, s) in enumerate(steps):
        for _ in range(4):
            if queue: queue.pop(0)()
        if idx == 8:
            vm.wait(v1id)
            a("s_barrier")
            stamp(a)
        n = vm.need(tid[2*idx+1])
        vs = f" vmcnt({n})" if n is not None else ""
        if idx + 1 < 18:
            vread(idx + 1)
            a(f"s_waitcnt lgkmcnt(4){vs}")
        else:
            a(f"s_waitcnt lgkmcnt(0){vs}")
        th = TB + idx * 8; tl = th + 4
        for (tt, bh) in ((th, 0), (th, 1), (tl, 0)):
            for pi in range(2):
                r = BF + (idx % 2) * 16 + (pi*2+bh) * 4
                d = AC + (pi*2+par) * 4
                c = "0" if (s == 0 and tt == th and bh == 0) else f"v[{d}:{d+3}]"
                a(f"v_mfma_f32_16x16x32_bf16 v[{d}:{d+3}], v[{tt}:{tt+3}], v[{r}:{r+3}], {c}")
    assert not queue
    stamp(a)
    a(f"s_mov_b32 s35, {f32hex(-np.log2(np.e))}\ns_waitcnt vmcnt(0)")
    stamp(a)
    a("v_add_u32 v12, s42, v3")
    for f in range(8): a(f"ds_read_b128 v[{64+4*f}:{67+4*f}], v12 offset:{f*1024}")
    started = set()
    def red(f, reg):
        eta = f // nks
        for rho in range(2):
            o = rho * 2 + eta; d = 32 + 4*o; rr = reg + 2*rho
            if o not in started:
                started.add(o)
                a(f"v_lshlrev_b32 v{d}, 16, v{rr}\nv_and_b32 v{d+1}, 0xffff0000, v{rr}\nv_lshlrev_b32 v{d+2}, 16, v{rr+1}\nv_and_b32 v{d+3}, 0xffff0000, v{rr+1}")
            else:
                t = 128 + 4 * rho
                a(f"v_lshlrev_b32 v{t}, 16, v{rr}\nv_and_b32 v{t+1}, 0xffff0000, v{rr}\nv_lshlrev_b32 v{t+2}, 16, v{rr+1}\nv_and_b32 v{t+3}, 0xffff0000, v{rr+1}")
                for v in range(4): a(f"v_add_f32 v{d+v}, v{d+v}, v{t+v}")
    for f in range(8):
        a(f"s_waitcnt lgkmcnt({7-f})")
        red(f, 64 + 4*f)
    T = 8
    def rnd4(b):
        a(f"v_cvt_pk_bf16_f32 v{T}, v{b}, v{b+1}\nv_cvt_pk_bf16_f32 v{T+1}, v{b+2}, v{b+3}")
        a(f"v_lshlrev_b32 v{b}, 16, v{T}\nv_and_b32 v{b+1}, 0xffff0000, v{T}\nv_lshlrev_b32 v{b+2}, 16, v{T+1}\nv_and_b32 v{b+3}, 0xffff0000, v{T+1}")
    def unp4(d, r):
        a(f"v_lshlrev_b32 v{d}, 16, v{r}\nv_and_b32 v{d+1}, 0xffff0000, v{r}\nv_lshlrev_b32 v{d+2}, 16, v{r+1}\nv_and_b32 v{d+3}, 0xffff0000, v{r+1}")
    for v in range(4):
        E0, O0, E1, O1 = AC+v, AC+4+v, AC+8+v, AC+12+v
        op = "v_add_f32" if v % 2 == 0 else "v_sub_f32"
        a(f"{op} v{E0}, v{E0}, v14\n{op} v{E1}, v{E1}, v15")
        a(f"""v_add_f32 v48, v{E0}, v{O0}
v_sub_f32 v49, v{E0}, v{O0}
v_add_f32 v50, v{E1}, v{O1}
v_sub_f32 v51, v{E1}, v{O1}
v_add_f32 v{64+v}, v48, v50
v_add_f32 v{68+v}, v49, v51
v_sub_f32 v{72+v}, v48, v50
v_sub_f32 v{76+v}, v49, v51""")
    stamp(a)
    for o in range(4):
        rho, eta = divmod(o, 2)
        G_ = 32 + 4*o; S_ = 64 + 4*o
        rnd4(G_)
        unp4(52, BB + 2*eta)
        for v in range(4): a(f"v_add_f32 v{G_+v}, v{G_+v}, v{52+v}")
        rnd4(G_)
        for v in range(4): a(f"v_mul_f32 v{52+v}, s35, v{G_+v}")
        for v in range(4): a(f"v_exp_f32 v{52+v}, v{52+v}")
        for v in range(4): a(f"v_add_f32 v{52+v}, 1.0, v{52+v}")
        for v in range(4): a(f"v_rcp_f32 v{52+v}, v{52+v}")
        for v in range(4): a(f"v_mul_f32 v{G_+v}, v{G_+v}, v{52+v}")
        rnd4(G_)
        rnd4(S_)
        for v in range(4): a(f"v_mul_f32 v{S_+v}, v{S_+v}, v{G_+v}")
        rnd4(S_)
        unp4(52, XB + 2*o)
        for v in range(4): a(f"v_add_f32 v{S_+v}, v{S_+v}, v{52+v}")
        a(f"v_cvt_pk_bf16_f32 v{56+2*o}, v{S_}, v{S_+1}\nv_cvt_pk_bf16_f32 v{57+2*o}, v{S_+2}, v{S_+3}")
        a(f"buffer_store_dwordx2 v[{56+2*o}:{57+2*o}], v6, s[48:51], s{41 if rho else 40} offen offset:{576*eta}")
    stamp(a)
    if gemm.STAMPS: a(f"s_lshl_b32 s{swg}, s{swg}, 1\ns_lshr_b32 s59, s24, 2\ns_add_u32 s{swg}, s{swg}, s59\ns_and_b32 s24, s24, 3")
    stamp_flush(a, swg, 24, 0x8200000)
    a("s_endpgm")
```

```python
import sys; sys.path.insert(0, "gen")
from roles1 import *
import gemm, gemm6, pref2
from fft import *
from roles2 import *
from ri8 import role_ri8
from g2k import role_g2k
from cf2 import role_cf2
from rd2 import role_rd2
def epi_hook(a, g):
    a("s_lshl_b32 s46, s2, 2\ns_add_u32 s46, s46, s24")
    r = 0
    for kind, ref, nb in [("ka", KA_W2, D*F*2), ("lab", "tab_ti", 18*36*1024), ("lab", "tab_cf", 69632), ("ka", KA_B2, D*2)]:
        if kind == "ka":
            a(f"s_load_dwordx2 s[4:5], s[0:1], {ref}\ns_waitcnt lgkmcnt(0)")
            srd(a, 8, 4, nb)
        else:
            table_srd(a, 8, ref, nb, 4)
        per = -(-nb // (1024 * 1024))
        a(f"s_mul_i32 s47, s46, {per*1024}")
        for j in range(per):
            d = g.AFR + (r % g.RA) * 4; r += 1
            a(f"buffer_load_dwordx4 v[{d}:{d+3}], v{g.VA}, s[8:11], s47 offen\ns_add_u32 s47, s47, 1024")
def build(out, prio=None, stamps=False, hprio=None, w2k0=False):
    gemm.STAMPS = stamps
    g = gemm6.G(4, 4, 4, 4)
    a = Asm()
    a(f"""; v16
; @launch kernel=k0_kernel grid=(512,1,1) block=(256,1,1) lds=75776
; @launch kernel=k1_kernel grid=({512 if PRE else 456},1,1) block=(256,1,1) lds=75776
; @launch kernel=k2_kernel grid=(410,1,1) block=(256,1,1) lds=73728
; @launch kernel=k3_kernel grid=(256,1,1) block=(384,1,1) lds=145408""")
    a('.amdgcn_target "amdgcn-amd-amdhsa--gfx950"\n.text')
    kernel_header(a, "k0_kernel")
    a("s_cmp_ge_u32 s2, 256\ns_cbranch_scc1 K0_pf")
    role_ln3(a, 2)
    a.label("K0_pf")
    a("s_sub_u32 s3, s2, 256\ns_cmp_ge_u32 s3, 64\ns_cbranch_scc1 K0_code")
    role_wt2(a, 3)
    a.label("K0_code")
    a("s_cmp_ge_u32 s2, 328\ns_cbranch_scc1 K0_st\ns_cmp_lg_u32 s2, 320\ns_cbranch_scc1 K0_end")
    pref2.touch_code(a, "k1_kernel", 65536, 0, 1, 4, 2)
    a("s_endpgm")
    a.label("K0_st")
    a("s_sub_u32 s3, s2, 328\ns_cmp_ge_u32 s3, 184\ns_cbranch_scc1 K0_end")
    mall_stream(a, 3, 184, [("ka", KA_W1, D*F*2), ("lab", "tab_tf", 36*18*1024), ("ka", KA_B1, F*2)] + ([("ka", KA_W2, D*F*2), ("lab", "tab_ti", 18*36*1024), ("lab", "tab_cf", 69632), ("ka", KA_B2, D*2)] if w2k0 else []))
    a.label("K0_end")
    a("s_endpgm")
    kernel_header(a, "k1_kernel")
    a("s_cmp_ge_u32 s2, 256\ns_cbranch_scc1 K1_b")
    gemm6.role_g1(a, 2, g, prio, None if w2k0 else epi_hook)
    a.label("K1_b")
    a("s_cmp_ge_u32 s2, 264\ns_cbranch_scc1 K1_rd")
    pref2.touch_code(a, "k1_kernel", 32768, 0, 1, 4, 2)
    a("s_endpgm")
    a.label("K1_rd")
    a("s_sub_u32 s3, s2, 264\ns_cmp_ge_u32 s3, 192\ns_cbranch_scc1 K1_pre")
    role_rd2(a, 3, hprio)
    a.label("K1_pre")
    if PRE:
        a("s_sub_u32 s3, s2, 456\ns_cmp_ge_u32 s3, 56\ns_cbranch_scc1 K1_end")
        a(f"s_load_dwordx2 s[6:7], s[0:1], {KA_WS}\ns_waitcnt lgkmcnt(0)")
        srd(a, 12, 6, WS_P + 18874368)
        a(f"v_lshlrev_b32 v1, 4, v0\nv_mov_b32 v4, 0\nv_mov_b32 v5, 0\nv_mov_b32 v6, 0\nv_mov_b32 v7, 0\ns_mul_i32 s16, s3, {83*4096}\ns_add_u32 s16, s16, {WS_P}\ns_mov_b32 s17, 0")
        a.label("K1_prel")
        a("buffer_store_dwordx4 v[4:7], v1, s[12:15], s16 offen sc1\ns_add_u32 s16, s16, 4096\ns_add_u32 s17, s17, 1\ns_cmp_lt_u32 s17, 83\ns_cbranch_scc1 K1_prel")
    a.label("K1_end")
    a("s_endpgm")
    kernel_header(a, "k2_kernel")
    a("s_cmp_ge_u32 s2, 256\ns_cbranch_scc1 K2_b")
    role_g2k(a, 2, g, prio)
    a.label("K2_b")
    a("s_cmp_ge_u32 s2, 264\ns_cbranch_scc1 K2_cf")
    pref2.touch_code(a, "k2_kernel", 32768, 0, 1, 4, 2)
    a("s_endpgm")
    a.label("K2_cf")
    a("s_sub_u32 s3, s2, 264\ns_cmp_ge_u32 s3, 146\ns_cbranch_scc1 K2_end")
    role_cf2(a, 3, hprio)
    a.label("K2_end")
    a("s_endpgm")
    kernel_header(a, "k3_kernel")
    a("s_cmp_ge_u32 s2, 256\ns_cbranch_scc1 K3_end")
    a("s_cmp_ge_u32 s2, 8\ns_cbranch_scc1 K3_a\nv_cmp_gt_u32 vcc, 320, v0\ns_cbranch_vccnz K3_a\nv_and_b32 v8, 63, v0\nv_lshlrev_b32 v8, 1, v8")
    pref2.touch_code(a, "k3_kernel", 8192, 8, 9, 4, 10)
    a("v_add_u32 v10, 64, v10\nglobal_load_dword v9, v10, s[4:5]")
    a.label("K3_a")
    role_ri8(a, 2)
    a.label("K3_end")
    a("s_endpgm")
    a(".fill 16384, 4, 0xbf800000")
    a('.section .rodata,"a"\n.p2align 6')
    a(kernel_desc("k0_kernel", 64, 40))
    a(kernel_desc("k1_kernel", 256, 100))
    a(kernel_desc("k2_kernel", 256, 100))
    a(kernel_desc("k3_kernel", 256, 100))
    emit_bytes(a, "tab_cf", cf_tables())
    emit_big_tables(a)
    open(out, "w").write(a.text())
gemm6.PK = True
import os
PRE = bool(os.environ.get("PRE"))
build("v37.s", prio=2, w2k0=True)
build("v37_s.s", prio=2, w2k0=True, stamps=True)
```

```python
from asmlib import *
from roles1 import *
from roles2 import dpp_allreduce32, WT_LDS_HALF
from fft import slot_info, dord, dreg, table_srd, emit_bytes
import numpy as np
import gemm
from gemm import stamp, stamp_flush, Cnt

WS_WMAX = WS_BASE + 0x1810000
def h16(x): return np.asarray(x, dtype=np.float64).astype(np.float16).view(np.uint16)

def emit_big_tables16(a):
    c = np.cos(2 * np.pi * np.arange(576) / 576); c[np.abs(c) < 1e-15] = 0.0
    h = h16(c)
    for i in range(576): a(f".set c0_{i}, {h[i]}")
    for s in range(576):
        k, im = slot_info(s)
        a(f".set sk_{s}, {k}\n.set so_{s}, {144*im}")
    a(""".altmacro
.macro EH idx
.short c0_\\idx
.endm
.macro GETK slot
.set curk, sk_\\slot
.set curo, so_\\slot
.endm
.macro TFFRAG
 .set g_, 0
 .rept 4
  .set j_, 0
  .rept 16
   GETK %(16*st_+j_)
   .set n_, 32*s_+8*g_
   .rept 8
    EH %((n_*curk+curo)%576)
    .set n_, n_+1
   .endr
   .set j_, j_+1
  .endr
  .set g_, g_+1
 .endr
.endm
.macro TIFRAG
 .set g_, 0
 .rept 4
  .set i_, 0
  .rept 16
   .set sl_, par_*288+(4*s_+g_)*8
   .rept 8
    GETK %(sl_)
    EH %(((16*nt_+i_)*curk+curo)%576)
    .set sl_, sl_+1
   .endr
   .set i_, i_+1
  .endr
  .set g_, g_+1
 .endr
.endm
.p2align 8
tab_tf:
.set st_, 0
.rept 36
 .set s_, 0
 .rept 9
  TFFRAG
  .set s_, s_+1
 .endr
 .set st_, st_+1
.endr
.set sk_1, 0
.set so_1, 144
.p2align 8
tab_ti:
.set nt_, 0
.rept 18
 .set par_, 0
 .rept 2
  .set s_, 0
  .rept 9
   TIFRAG
   .set s_, s_+1
  .endr
  .set par_, par_+1
 .endr
 .set nt_, nt_+1
.endr
.noaltmacro
""")
TF_BYTES = 36*9*1024; TI_BYTES = 18*18*1024; CF_BYTES = 2*36864

def cf_tables16():
    def mat(theta_fn):
        C = np.zeros((2, 64, 8)); Sn = np.zeros((2, 64, 8))
        for q in range(2):
            for l in range(64):
                for t in range(8):
                    th = theta_fn(dord(q, l // 32, t), l % 32)
                    C[q, l, t] = np.cos(th); Sn[q, l, t] = np.sin(th)
        C[np.abs(C) < 1e-15] = 0; Sn[np.abs(Sn) < 1e-15] = 0
        return np.stack([h16(C), h16(Sn), h16(-Sn)]).tobytes()
    def tw(fn, scale):
        T = np.zeros((32, 64))
        for v in range(16):
            for l in range(64):
                th = fn(dreg(v, l // 32), l % 32)
                T[v, l] = np.cos(th) * scale; T[16 + v, l] = np.sin(th) * scale
        return np.ascontiguousarray(T.reshape(8, 4, 64).transpose(0, 2, 1)).astype(np.float32).tobytes()
    out = []
    for pi in range(2):
        out.append(mat(lambda k, o: 2 * np.pi * k * o / 32))
        out.append(mat(lambda a_, c_: 2 * np.pi * a_ * (2 * c_ + pi) / 64))
        out.append(mat(lambda c_, a_: 2 * np.pi * a_ * (2 * c_ + pi) / 64))
        out.append(tw(lambda b_, c_: 2 * np.pi * b_ * (2 * c_ + pi) / 2048, 1.0))
        out.append(tw(lambda c_, b_: 2 * np.pi * b_ * (2 * c_ + pi) / 2048, 0.125))
        out.append(b"\0" * 2048)
    return b"".join(out)

def wave_umax(a, v, t):
    for r in (8, 4, 2, 1):
        a(f"s_nop 1\nv_max_u32_dpp v{v}, v{v}, v{v} row_ror:{r} row_mask:0xf bank_mask:0xf")
    a(f"v_mov_b32 v{t}, v{v}\ns_nop 1\nv_permlane16_swap_b32 v{v}, v{t}\ns_nop 1\nv_max_u32 v{v}, v{v}, v{t}")
    a(f"v_mov_b32 v{t}, v{v}\ns_nop 1\nv_permlane32_swap_b32 v{v}, v{t}\ns_nop 1\nv_max_u32 v{v}, v{v}, v{t}")

def load_wexp(a, vl16, r4, sE):
    a(f"s_mov_b32 s{sE}, {WS_WMAX}\nbuffer_load_dwordx4 v[{r4}:{r4+3}], v{vl16}, s[12:15], s{sE} offen")
def reduce_wexp(a, r4, sE):
    a(f"v_max_u32 v{r4}, v{r4}, v{r4+1}\nv_max_u32 v{r4+2}, v{r4+2}, v{r4+3}\nv_max_u32 v{r4}, v{r4}, v{r4+2}")
    wave_umax(a, r4, r4 + 1)
    a(f"s_nop 0\nv_readfirstlane_b32 s{sE}, v{r4}\ns_nop 3\ns_lshr_b32 s{sE}, s{sE}, 7\ns_max_u32 s{sE}, s{sE}, 20\ns_min_u32 s{sE}, s{sE}, 240")

def role_rd16(a, swg, prio=None):
    stamp(a)
    a(f"""
s_load_dwordx2 s[6:7], s[0:1], {KA_WS}
v_lshrrev_b32 v1, 6, v0
v_and_b32 v2, 63, v0
v_readfirstlane_b32 s24, v1
s_and_b32 s25, s{swg}, 31
s_lshr_b32 s26, s{swg}, 5
s_mul_i32 s27, s26, 6
s_add_u32 s27, s27, s24
""")
    if prio is not None: a(f"s_setprio {prio}")
    table_srd(a, 8, "tab_tf", TF_BYTES, 4)
    a("s_waitcnt lgkmcnt(0)")
    srd(a, 12, 6, WS_BYTES)
    a(f"""
v_lshlrev_b32 v3, 4, v2
s_lshr_b32 s28, s24, 1
s_lshl_b32 s28, s28, 5
s_add_u32 s28, s28, s25
s_lshl_b32 s28, s28, 1
s_and_b32 s29, s24, 1
s_add_u32 s28, s28, s29
s_mul_i32 s28, s28, {18*1024}
s_add_u32 s28, s28, {WS_XN}
s_mul_i32 s29, s24, {18*1024}
s_mov_b32 s35, 0
""")
    for i in range(18):
        a(f"s_add_u32 m0, s29, {i*1024}\ns_add_u32 s31, s28, {i*1024}\nbuffer_load_dwordx4 v3, s[12:15], s31 offen lds")
    a(f"v_add_u32 v4, {36*1024}, v3")
    TB = 64
    a.label("RD_pass")
    a(f"s_mul_i32 s30, s27, {9*1024}")
    for i in range(9):
        if i % 4 == 0: a(f"s_add_u32 s31, s30, {i*1024}")
        a(f"buffer_load_dwordx4 v[{TB+4*i}:{TB+4*i+3}], v3, s[8:11], s31 offen offset:{(i%4)*1024}")
    a("s_cmp_lg_u32 s35, 0\ns_cbranch_scc1 RD_nobar\ns_waitcnt vmcnt(9)\ns_barrier")
    a.label("RD_nobar")
    AC, XF = 16, 140
    def xread(s9):
        for T in range(4):
            for eta in range(2):
                r = XF + (s9 % 2) * 32 + (T*2+eta) * 4
                off = (T * 18 + 9 * eta + s9) * 1024
                if off >= 36*1024: a(f"ds_read_b128 v[{r}:{r+3}], v4 offset:{off-36*1024}")
                else: a(f"ds_read_b128 v[{r}:{r+3}], v3 offset:{off}")
    xread(0)
    for s9 in range(9):
        if s9 + 1 < 9:
            xread(s9 + 1)
            a(f"s_waitcnt lgkmcnt(8) vmcnt({8 - s9})")
        else:
            a("s_waitcnt lgkmcnt(0) vmcnt(0)")
        for te in range(8):
            r = XF + (s9 % 2) * 32 + te * 4
            tb = TB + s9 * 4
            d = AC + te * 4
            c = "0" if s9 == 0 else f"v[{d}:{d+3}]"
            a(f"v_mfma_f32_16x16x32_f16 v[{d}:{d+3}], v[{r}:{r+3}], v[{tb}:{tb+3}], {c}")
    a("s_nop 7\ns_nop 3")
    a(f"s_cmp_lt_u32 s27, 18\ns_cselect_b32 s32, 1.0, -1.0")
    for T in range(4):
        for v in range(4):
            a(f"v_fma_f32 v{AC+T*8+v}, v{AC+T*8+4+v}, s32, v{AC+T*8+v}")
    for tau in range(2):
        for v in range(4):
            a(f"v_add_f32 v{48+tau*4+v}, v{AC+tau*8+v}, v{AC+(2+tau)*8+v}")
            a(f"v_sub_f32 v{56+tau*4+v}, v{AC+tau*8+v}, v{AC+(2+tau)*8+v}")
    for j in range(8): a(f"v_cvt_pk_f16_f32 v{208+j}, v{48+2*j}, v{49+2*j}")
    a(f"""
s_mul_i32 s33, s25, 36
s_add_u32 s33, s33, s27
s_lshl_b32 s33, s33, 11
s_add_u32 s33, s33, {WS_Z}
buffer_store_dwordx4 v[208:211], v3, s[12:15], s33 offen sc1
buffer_store_dwordx4 v[212:215], v3, s[12:15], s33 offen offset:1024 sc1
s_cmp_lg_u32 s35, 0
s_cbranch_scc1 RD_end
s_cmp_ge_u32 s24, 2
s_cbranch_scc1 RD_end
s_mov_b32 s35, 1
s_add_u32 s27, s27, 4
s_branch RD_pass
""")
    a.label("RD_end")
    stamp(a)
    stamp_flush(a, swg, 24, 0x8300000)
    a("s_endpgm")

D_, O_, TA_, TB_, TW_, W_, T_ = 16, 48, 80, 104, 128, 160, 176
LSTR = 528
L_TA, L_TB1, L_TB4, L_TW1, L_TW2, L_DATA, L_ST = 0, 6144, 12288, 18432, 26624, 36864, 53248
def stage16(a, tab, data_as_a, inverse):
    R, I = D_, D_ + 8
    C, Sx, N = tab, tab + 8, tab + 16
    P, Q = (N, Sx) if inverse else (Sx, N)
    first = [True, True]
    for (dr, tr_), (di, ti) in (((R, C), (I, C)), ((I, P), (R, Q))):
        for q in range(2):
            for o, (dd, tt) in enumerate(((dr, tr_), (di, ti))):
                d = O_ + 16 * o
                x = f"v[{dd+4*q}:{dd+4*q+3}]"; y = f"v[{tt+4*q}:{tt+4*q+3}]"
                if not data_as_a: x, y = y, x
                c = "0" if first[o] else f"v[{d}:{d+15}]"
                first[o] = False
                a(f"v_mfma_f32_32x32x16_f16 v[{d}:{d+15}], {x}, {y}, {c}")
    a("s_nop 15\ns_nop 3")
def tw_cvt(a, inverse):
    for v in range(0, 16, 2):
        for u in (v, v + 1):
            xr, xi, c, s = O_+u, O_+16+u, TW_+u, TW_+16+u
            t = T_ + 2 * (u % 2) + 4 * ((v // 2) % 2)
            n1, n2 = ("-", "") if inverse else ("", "-")
            a(f"v_mul_f32 v{t}, v{xr}, v{c}\nv_mul_f32 v{t+1}, v{xi}, v{c}\nv_fma_f32 v{t}, {n1}v{xi}, v{s}, v{t}\nv_fma_f32 v{t+1}, {n2}v{xr}, v{s}, v{t+1}")
        t = T_ + 4 * ((v // 2) % 2)
        a(f"v_cvt_pk_f16_f32 v{D_+v//2}, v{t}, v{t+2}\nv_cvt_pk_f16_f32 v{D_+8+v//2}, v{t+1}, v{t+3}")
    a("s_nop 1")

def role_cf16(a, swg, prio=None):
    stamp(a)
    a(f"""
s_load_dwordx2 s[6:7], s[0:1], {KA_WS}
v_lshrrev_b32 v1, 6, v0
v_and_b32 v2, 63, v0
v_readfirstlane_b32 s24, v1
s_and_b32 s25, s{swg}, 1             ; pi
s_lshr_b32 s26, s{swg}, 1
s_and_b32 s26, s26, 1                ; par
s_lshr_b32 s27, s{swg}, 2            ; cg
""")
    if prio is not None: a(f"s_setprio {prio}")
    table_srd(a, 8, "tab_cf", CF_BYTES, 4)
    a(f"""
v_lshlrev_b32 v3, 4, v2
v_lshlrev_b32 v4, 2, v2
s_lshl_b32 s28, s27, 2
s_add_u32 s28, s28, s24
s_lshl_b32 s29, s28, 1
s_add_u32 s29, s29, s26              ; k
s_mul_i32 s30, s26, 288
s_lshl_b32 s31, s28, 1
s_add_u32 s30, s30, s31
s_cmp_eq_u32 s27, 36
s_cselect_b32 s30, 1, s30
s_and_b32 s43, s30, 7
s_and_b32 s31, s30, 8
s_lshl_b32 s31, s31, 4
s_lshr_b32 s30, s30, 4
s_lshl_b32 s30, s30, 11              ; st*2048
s_add_u32 s30, s30, s31
s_lshl_b32 s31, s25, 10
s_add_u32 s30, s30, s31
s_add_u32 s30, s30, {WS_Z}
v_lshrrev_b32 v11, 3, v2
v_and_b32 v12, 7, v2
v_xor_b32 v12, v12, v11
v_mul_u32_u24 v11, {36*2048}, v11
v_lshl_add_u32 v11, v12, 4, v11
v_and_b32 v12, 7, v2
v_xor_b32 v13, s43, v12
v_lshlrev_b32 v13, 4, v13
v_lshl_add_u32 v13, v2, 7, v13
v_xor_b32 v14, 16, v13
s_cmp_eq_u32 s29, 0
s_cselect_b32 s33, 1, 0
s_cmp_eq_u32 s29, 288
s_cselect_b32 s33, 1, s33
s_mul_i32 s34, s25, 36864
s_mul_i32 s40, s24, 9216
s_add_u32 s34, s34, s40
s_waitcnt lgkmcnt(0)
""")
    srd(a, 12, 6, WS_BYTES)
    a(f"s_lshl_b32 s44, s24, 8\ns_add_u32 s44, s44, s30\ns_lshl_b32 s45, s24, 12")
    for i in range(4):
        a(f"s_add_u32 m0, s45, {L_DATA + i*1024}\ns_add_u32 s42, s44, {i*8*36*2048}\nbuffer_load_dwordx4 v11, s[12:15], s42 offen lds")
    for i in range(9):
        if i % 4 == 0: a(f"s_add_u32 m0, s40, {i*1024}\ns_add_u32 s42, s34, {i*1024}")
        a(f"buffer_load_dwordx4 v3, s[8:11], s42 offen offset:{(i%4)*1024} lds")
    load_wexp(a, 3, T_, 46)
    a(f"s_min_u32 s38, s29, 288\ns_lshl_b32 s38, s38, 13\ns_lshl_b32 s39, s25, 12\ns_add_u32 s38, s38, s39\ns_add_u32 s38, s38, {WS_WT}")
    for v in range(16):
        a(f"buffer_load_dword v{W_+v}, v4, s[12:15], s38 offen offset:{v*256}")
    stamp(a)
    a("s_waitcnt vmcnt(16)\ns_barrier")
    stamp(a)
    a("s_cmp_lg_u32 s27, 36\ns_cbranch_scc1 CF_go\ns_cmp_eq_u32 s24, 0\ns_cbranch_scc1 CF_go\ns_endpgm")
    a.label("CF_go")
    def rd_tab(reg, lds, n):
        for i in range(n): a(f"ds_read_b128 v[{reg+4*i}:{reg+4*i+3}], v3 offset:{lds+i*1024}")
    for part, va in ((0, 13), (1, 14)):
        for q in range(2):
            r = D_ + part*8 + q*4
            a(f"ds_read_b128 v[{r}:{r+3}], v{va} offset:{L_DATA + q*8192}")
    rd_tab(TB_, L_TB1, 6)
    reduce_wexp(a, T_, 46)
    a("s_sub_u32 s32, 247, s46\ns_sub_u32 s32, s32, s33\ns_lshl_b32 s32, s32, 23")
    a("s_waitcnt lgkmcnt(0)")
    a("s_cmp_eq_u32 s33, 0\ns_cbranch_scc1 CF_hasim")
    for j in range(8): a(f"v_mov_b32 v{D_+8+j}, 0")
    a("s_nop 1")
    a.label("CF_hasim")
    rd_tab(TW_, L_TW1, 8)
    rd_tab(TA_, L_TA, 6)
    stage16(a, TB_, True, False)
    stamp(a)
    a("s_waitcnt lgkmcnt(0)")
    rd_tab(TB_, L_TB4, 6)
    tw_cvt(a, False)
    rd_tab(TW_, L_TW2, 8)
    stamp(a)
    stage16(a, TA_, False, False)
    stamp(a)
    a("s_waitcnt vmcnt(0)")
    for v in range(0, 16, 2):
        for u in (v, v + 1):
            xr, xi, w = O_+u, O_+16+u, W_+u
            t = T_ + 4 * (u % 2)
            a(f"""v_lshlrev_b32 v{t}, 16, v{w}
v_and_b32 v{t+1}, 0xffff0000, v{w}
v_mul_f32 v{t}, s32, v{t}
v_mul_f32 v{t+1}, s32, v{t+1}
v_mul_f32 v{t+2}, v{xr}, v{t}
v_mul_f32 v{t+3}, v{xr}, v{t+1}
v_fma_f32 v{t+2}, -v{xi}, v{t+1}, v{t+2}
v_fma_f32 v{t+3}, v{xi}, v{t}, v{t+3}""")
        a(f"v_cvt_pk_f16_f32 v{D_+v//2}, v{T_+2}, v{T_+6}\nv_cvt_pk_f16_f32 v{D_+8+v//2}, v{T_+3}, v{T_+7}")
    a("s_nop 1")
    stage16(a, TA_, True, True)
    a("s_waitcnt lgkmcnt(0)")
    tw_cvt(a, True)
    stage16(a, TB_, False, True)
    stamp(a)
    a("s_cmp_lg_u32 s27, 36\ns_cbranch_scc1 CF_out")
    a(f"""
v_and_b32 v5, 31, v2
v_lshrrev_b32 v6, 5, v2
v_lshlrev_b32 v6, 9, v6
v_lshl_add_u32 v5, v5, 2, v6
s_lshl_b32 s38, s25, 12
s_add_u32 s38, s38, {WS_V288}
""")
    for v in range(16):
        a(f"v_mul_f32 v{O_+v}, 0x3e000000, v{O_+v}\nbuffer_store_dword v{O_+v}, v5, s[12:15], s38 offen offset:{(8*(v//4)+v%4)*128}")
    a("s_endpgm")
    a.label("CF_out")
    a(f"""
v_and_b32 v5, 31, v2
v_mul_u32_u24 v5, {LSTR}, v5
v_lshrrev_b32 v6, 5, v2
v_lshl_add_u32 v5, v6, 6, v5
s_lshl_b32 s38, s24, 2
s_add_u32 s38, s38, {L_ST}
v_add_u32 v5, s38, v5
""")
    for v in range(16):
        xr, xi = O_+v, O_+16+v
        t = T_ + (v % 4)
        off = (((v // 4) % 2) * 16 + 8 * (v // 8) + v % 4) * 16
        a(f"v_mul_f32 v{xr}, 0x3e000000, v{xr}\nv_mul_f32 v{xi}, 0x3e000000, v{xi}\nv_cvt_pk_f16_f32 v{t}, v{xr}, v{xi}\nds_write_b32 v5, v{t} offset:{off}")
    a(f"""
v_lshrrev_b32 v6, 5, v2
v_and_b32 v7, 31, v2
v_mul_u32_u24 v8, {LSTR}, v6
v_lshl_add_u32 v8, v7, 4, v8
s_mul_i32 s38, s24, {8*LSTR}
s_add_u32 s38, s38, {L_ST}
v_add_u32 v8, s38, v8
v_lshrrev_b32 v9, 4, v2
v_mul_u32_u24 v9, {9*1024}, v9
v_and_b32 v10, 15, v2
v_lshl_add_u32 v9, v10, 4, v9
s_lshl_b32 s38, s25, 1
s_add_u32 s38, s38, s26
s_lshl_b32 s38, s38, 6
s_lshl_b32 s39, s24, 4
s_add_u32 s38, s38, s39
s_mul_i32 s38, s38, {9*1024}
s_lshr_b32 s39, s27, 2
s_lshl_b32 s39, s39, 10
s_add_u32 s38, s38, s39
s_and_b32 s39, s27, 3
s_lshl_b32 s39, s39, 8
s_add_u32 s38, s38, s39
s_add_u32 s38, s38, {WS_V}
s_waitcnt lgkmcnt(0)
""")
    stamp(a)
    a("s_barrier")
    for j in range(4): a(f"ds_read_b128 v[{16+4*j}:{19+4*j}], v8 offset:{j*2*LSTR}")
    for j in range(4):
        a(f"s_waitcnt lgkmcnt({3-j})\nbuffer_store_dwordx4 v[{16+4*j}:{19+4*j}], v9, s[12:15], s38 offen sc1")
        if j < 3: a(f"s_add_u32 s38, s38, {4*9*1024}")
    stamp(a)
    stamp_flush(a, swg, 24, 0x8400000)
    a("s_endpgm")

def role_ri16(a, swg, nks=4):
    stamp(a)
    a(f"""
s_load_dwordx2 s[6:7], s[0:1], {KA_WS}
s_load_dwordx2 s[16:17], s[0:1], {KA_X}
s_load_dwordx2 s[18:19], s[0:1], {KA_OUT}
s_load_dwordx2 s[44:45], s[0:1], {KA_B2}
v_lshrrev_b32 v1, 6, v0
v_and_b32 v2, 63, v0
v_readfirstlane_b32 s24, v1
s_and_b32 s25, s{swg}, 63
s_lshr_b32 s26, s{swg}, 6
s_mul_i32 s27, s26, 5
s_cmp_eq_u32 s26, 3
s_cselect_b32 s47, 1, 0
s_sub_u32 s27, s27, s47
s_add_u32 s27, s27, s24              ; nt
s_cmp_lt_u32 s26, 2
s_cselect_b32 s47, 5, 4
v_lshlrev_b32 v3, 4, v2
s_mul_i32 s28, s25, {9*1024}
s_add_u32 s28, s28, {WS_V}
s_mul_i32 s30, s27, {18*1024}
s_mul_i32 s29, s24, 6
""")
    table_srd(a, 8, "tab_ti", TI_BYTES, 4)
    a("s_waitcnt lgkmcnt(0)")
    srd(a, 12, 6, WS_BYTES)
    for i in range(6):
        a(f"""s_add_u32 s38, s29, {i}
s_mul_i32 s32, s38, 57
s_lshr_b32 s32, s32, 9               ; blk = f/9
s_mul_i32 s33, s32, {64*9*1024 - 9*1024}
s_lshl_b32 s34, s38, 10
s_mov_b32 m0, s34
s_add_u32 s33, s33, s34
s_add_u32 s33, s33, s28
buffer_load_dwordx4 v3, s[12:15], s33 offen lds""")
    a("s_cmp_lt_u32 s24, s47\ns_cbranch_scc1 RI_active\ns_waitcnt vmcnt(0)\ns_barrier\ns_endpgm")
    a.label("RI_active")
    TB, PB = 64, 136
    for i in range(18):
        if i % 4 == 0: a(f"s_add_u32 s32, s30, {i*1024}")
        a(f"buffer_load_dwordx4 v[{TB+4*i}:{TB+4*i+3}], v3, s[8:11], s32 offen offset:{(i%4)*1024}")
    a(f"""
s_mul_i32 s31, s25, 36
s_add_u32 s31, s31, s27
s_lshl_b32 s31, s31, 12
s_add_u32 s31, s31, {WS_P}
s_add_u32 s43, s31, {18*4096}
""")
    for f in range(8):
        eta, ks = divmod(f, 4)
        a(f"buffer_load_dwordx4 v[{PB+4*f}:{PB+4*f+3}], v3, s[12:15], s{43 if eta else 31} offen offset:{ks*1024}")
    srd(a, 20, 16, S*D*2)
    srd(a, 48, 18, S*D*2)
    srd(a, 52, 44, D*2)
    XB, BB, WE = 168, 176, 180
    a(f"""
v_and_b32 v6, 15, v2
v_lshrrev_b32 v7, 3, v6
v_lshlrev_b32 v7, 4, v7
v_and_b32 v6, 7, v6
v_add_u32 v6, v6, v7
s_and_b32 s32, s25, 1
s_lshl_b32 s32, s32, 3
v_add_u32 v6, s32, v6
v_lshlrev_b32 v13, 7, v6
v_mul_u32_u24 v6, {32*1152}, v6
v_lshrrev_b32 v7, 4, v2
v_lshlrev_b32 v7, 3, v7
v_add_u32 v6, v6, v7
s_lshr_b32 s40, s25, 1
s_mul_i32 s40, s40, 1152
s_lshl_b32 s46, s27, 5
s_add_u32 s40, s40, s46
s_add_u32 s41, s40, {1024*1152}
""")
    for o in range(4):
        rho, eta = divmod(o, 2)
        a(f"buffer_load_dwordx2 v[{XB+2*o}:{XB+2*o+1}], v6, s[20:23], s{41 if rho else 40} offen offset:{576*eta}")
    for eta in range(2):
        a(f"buffer_load_dwordx2 v[{BB+2*eta}:{BB+2*eta+1}], v7, s[52:55], s46 offen offset:{576*eta}")
    a(f"s_lshr_b32 s43, s25, 1\ns_lshl_b32 s43, s43, 2\ns_add_u32 s43, s43, {WS_V288}\ns_add_u32 s34, s43, 4096")
    a("buffer_load_dword v14, v13, s[12:15], s43 offen\nbuffer_load_dword v15, v13, s[12:15], s34 offen")
    load_wexp(a, 3, WE, 36)
    NL = 8 + 9
    stamp(a)
    a(f"s_waitcnt vmcnt({18+NL})\ns_barrier")
    stamp(a)
    AC, BF = 16, 208
    steps = [(par, s) for par in range(2) for s in range(9)]
    def vread(idx):
        par, s = steps[idx]
        for pi in range(2):
            r = BF + (idx % 4) * 8 + pi * 4
            a(f"ds_read_b128 v[{r}:{r+3}], v3 offset:{((pi*2+par)*9 + s)*1024}")
    vread(0); vread(1); vread(2)
    for idx, (par, s) in enumerate(steps):
        if idx + 3 < 18: vread(idx + 3)
        lgn = 2 * min(3, 17 - idx)
        a(f"s_waitcnt lgkmcnt({lgn}) vmcnt({NL + 17 - idx})")
        th = TB + idx * 4
        for pi in range(2):
            r = BF + (idx % 4) * 8 + pi * 4
            d = AC + (pi*2+par) * 4
            c = "0" if s == 0 else f"v[{d}:{d+3}]"
            a(f"v_mfma_f32_16x16x32_f16 v[{d}:{d+3}], v[{th}:{th+3}], v[{r}:{r+3}], {c}")
    stamp(a)
    a(f"s_mov_b32 s35, {f32hex(-np.log2(np.e))}\ns_waitcnt vmcnt(0)")
    stamp(a)
    reduce_wexp(a, WE, 36)
    a(f"s_add_u32 s36, s36, 1\ns_lshl_b32 s36, s36, 23\ns_mov_b32 s37, {f32hex(8192.0/(S*D))}")
    started = set()
    for f in range(8):
        eta = f // 4
        for rho in range(2):
            o = rho * 2 + eta; d = 32 + 4*o; rr = PB + 4*f + 2*rho
            if o not in started:
                started.add(o)
                a(f"v_lshlrev_b32 v{d}, 16, v{rr}\nv_and_b32 v{d+1}, 0xffff0000, v{rr}\nv_lshlrev_b32 v{d+2}, 16, v{rr+1}\nv_and_b32 v{d+3}, 0xffff0000, v{rr+1}")
            else:
                t = 48 + 4 * rho
                a(f"v_lshlrev_b32 v{t}, 16, v{rr}\nv_and_b32 v{t+1}, 0xffff0000, v{rr}\nv_lshlrev_b32 v{t+2}, 16, v{rr+1}\nv_and_b32 v{t+3}, 0xffff0000, v{rr+1}")
                for v in range(4): a(f"v_add_f32 v{d+v}, v{d+v}, v{t+v}")
    T = 8
    def rnd4(b):
        a(f"v_cvt_pk_bf16_f32 v{T}, v{b}, v{b+1}\nv_cvt_pk_bf16_f32 v{T+1}, v{b+2}, v{b+3}")
        a(f"v_lshlrev_b32 v{b}, 16, v{T}\nv_and_b32 v{b+1}, 0xffff0000, v{T}\nv_lshlrev_b32 v{b+2}, 16, v{T+1}\nv_and_b32 v{b+3}, 0xffff0000, v{T+1}")
    def unp4(d, r):
        a(f"v_lshlrev_b32 v{d}, 16, v{r}\nv_and_b32 v{d+1}, 0xffff0000, v{r}\nv_lshlrev_b32 v{d+2}, 16, v{r+1}\nv_and_b32 v{d+3}, 0xffff0000, v{r+1}")
    for v in range(4):
        E0, O0, E1, O1 = AC+v, AC+4+v, AC+8+v, AC+12+v
        op = "v_add_f32" if v % 2 == 0 else "v_sub_f32"
        a(f"{op} v{E0}, v{E0}, v14\n{op} v{E1}, v{E1}, v15")
        a(f"""v_add_f32 v48, v{E0}, v{O0}
v_sub_f32 v49, v{E0}, v{O0}
v_add_f32 v50, v{E1}, v{O1}
v_sub_f32 v51, v{E1}, v{O1}
v_add_f32 v{64+v}, v48, v50
v_add_f32 v{68+v}, v49, v51
v_sub_f32 v{72+v}, v48, v50
v_sub_f32 v{76+v}, v49, v51""")
    for v in range(16): a(f"v_mul_f32 v{64+v}, s37, v{64+v}\nv_mul_f32 v{64+v}, s36, v{64+v}")
    stamp(a)
    for o in range(4):
        rho, eta = divmod(o, 2)
        G_ = 32 + 4*o; S_ = 64 + 4*o
        rnd4(G_)
        unp4(52, BB + 2*eta)
        for v in range(4): a(f"v_add_f32 v{G_+v}, v{G_+v}, v{52+v}")
        rnd4(G_)
        for v in range(4): a(f"v_mul_f32 v{52+v}, s35, v{G_+v}")
        for v in range(4): a(f"v_exp_f32 v{52+v}, v{52+v}")
        for v in range(4): a(f"v_add_f32 v{52+v}, 1.0, v{52+v}")
        for v in range(4): a(f"v_rcp_f32 v{52+v}, v{52+v}")
        for v in range(4): a(f"v_mul_f32 v{G_+v}, v{G_+v}, v{52+v}")
        rnd4(G_)
        rnd4(S_)
        for v in range(4): a(f"v_mul_f32 v{S_+v}, v{S_+v}, v{G_+v}")
        rnd4(S_)
        unp4(52, XB + 2*o)
        for v in range(4): a(f"v_add_f32 v{S_+v}, v{S_+v}, v{52+v}")
        a(f"v_cvt_pk_bf16_f32 v{56+2*o}, v{S_}, v{S_+1}\nv_cvt_pk_bf16_f32 v{57+2*o}, v{S_+2}, v{S_+3}")
        a(f"buffer_store_dwordx2 v[{56+2*o}:{57+2*o}], v6, s[48:51], s{41 if rho else 40} offen offset:{576*eta}")
    stamp(a)
    if gemm.STAMPS: a(f"s_lshl_b32 s{swg}, s{swg}, 1\ns_lshr_b32 s59, s24, 2\ns_add_u32 s{swg}, s{swg}, s59\ns_and_b32 s24, s24, 3")
    stamp_flush(a, swg, 24, 0x8200000)
    a("s_endpgm")
for f in range(36): assert (f*57)>>9 == f//9
```

```python
from roles2 import *
from f16 import wave_umax, WS_WMAX
def role_wt16(a, swg):
    a(f"""
s_load_dwordx2 s[4:5], s[0:1], {KA_WR}
s_load_dwordx2 s[6:7], s[0:1], {KA_WI}
s_load_dwordx2 s[16:17], s[0:1], {KA_WS}
s_and_b32 s31, s{swg}, 31            ; d
s_lshr_b32 s32, s{swg}, 5            ; khalf
v_lshrrev_b32 v1, 6, v0
v_and_b32 v2, 63, v0
v_readfirstlane_b32 s24, v1
v_lshlrev_b32 v3, 4, v2
s_mul_i32 s25, s31, 36992
s_lshl_b32 s26, s24, 10
s_add_u32 s25, s25, s26
s_waitcnt lgkmcnt(0)
""")
    srd(a, 8, 4, S*289*2)
    srd(a, 12, 6, S*289*2)
    srd(a, 20, 16, WS_WT + 289*8192)
    for it in range(10):
        lab = a.uid("WT_skip")
        if it == 9: a(f"s_cmp_lg_u32 s24, 0\ns_cbranch_scc1 {lab}")
        a(f"""
s_add_u32 s27, s26, {it*4096}
s_mov_b32 m0, s27
s_add_u32 s28, s25, {it*4096}
buffer_load_dwordx4 v3, s[8:11], s28 offen lds
s_add_u32 s27, s27, {WT_LDS_HALF}
s_mov_b32 m0, s27
s_nop 0
buffer_load_dwordx4 v3, s[12:15], s28 offen lds
""")
        if it == 9: a.label(lab)
    a(f"""
v_mul_u32_u24 v4, 578, v2
s_mul_i32 s27, s32, 160
s_mul_i32 s28, s24, 40
s_add_u32 s30, s27, s28              ; k0
s_lshl_b32 s27, s30, 1
v_add_u32 v4, s27, v4
v_and_b32 v5, 1, v2
v_lshrrev_b32 v6, 1, v2
v_lshlrev_b32 v5, 12, v5
v_lshl_add_u32 v5, v6, 2, v5
s_lshr_b32 s28, s31, 3
s_lshl_b32 s28, s28, 2
s_and_b32 s29, s31, 3
s_add_u32 s28, s28, s29
s_lshl_b32 s28, s28, 8
s_lshr_b32 s29, s31, 2
s_and_b32 s29, s29, 1
s_lshl_b32 s29, s29, 7
s_add_u32 s28, s28, s29
s_lshl_b32 s29, s30, 13
s_add_u32 s28, s28, s29
s_add_u32 s28, s28, {WS_WT}
s_mov_b32 s30, 0
v_mov_b32 v24, 0
s_waitcnt vmcnt(0)
s_barrier
""")
    lab = a.uid("WT_loop")
    a.label(lab)
    for j in range(4):
        a(f"ds_read_u16 v{8+2*j}, v4 offset:{2*j}\nds_read_u16 v{9+2*j}, v4 offset:{WT_LDS_HALF+2*j}")
    for j in range(4):
        a(f"s_waitcnt lgkmcnt({6-2*j})\nv_lshl_or_b32 v{16+j}, v{9+2*j}, 16, v{8+2*j}\nbuffer_store_dword v{16+j}, v5, s[20:23], s28 offen\nv_and_b32 v25, 0x7fff7fff, v{16+j}\nv_pk_max_u16 v24, v24, v25\ns_add_u32 s28, s28, 8192")
    a(f"""
v_add_u32 v4, 8, v4
s_add_u32 s30, s30, 1
s_cmp_lt_u32 s30, 10
s_cbranch_scc1 {lab}
v_lshrrev_b32 v25, 16, v24
v_and_b32 v24, 0xffff, v24
v_max_u32 v24, v24, v25
""")
    wave_umax(a, 24, 25)
    srd(a, 12, 16, WS_BYTES)
    a(f"""s_lshl_b32 s27, s{swg}, 2
s_add_u32 s27, s27, s24
s_lshl_b32 s27, s27, 2
s_add_u32 s27, s27, {WS_WMAX}
v_mov_b32 v25, 0
s_mov_b64 exec, 1
buffer_store_dword v24, v25, s[12:15], s27 offen
s_endpgm""")

def role_ln16(a, swg, flag=" sc1"):
    a(f"""
s_load_dwordx2 s[4:5], s[0:1], {KA_X}
s_load_dwordx2 s[6:7], s[0:1], {KA_WS}
s_and_b32 s16, s{swg}, 1             ; hi
s_lshr_b32 s21, s{swg}, 1            ; mtile
s_and_b32 s22, s21, 1                ; tau
s_lshr_b32 s23, s21, 1               ; rho*32+b
s_and_b32 s24, s23, 31               ; b
s_lshr_b32 s23, s23, 5               ; rho
s_lshl_b32 s25, s16, 1
s_add_u32 s25, s25, s22
s_lshl_b32 s25, s25, 8               ; *8*32 rows
s_lshl_b32 s23, s23, 10
s_add_u32 s25, s25, s23
s_add_u32 s25, s25, s24
s_mul_i32 s25, s25, 1152
v_lshrrev_b32 v3, 5, v0              ; j (0..7)
v_mul_u32_u24 v1, {32*1152}, v3
v_and_b32 v2, 31, v0
v_lshl_add_u32 v1, v2, 2, v1
s_waitcnt lgkmcnt(0)
""")
    srd(a, 8, 4, S*D*2)
    for i in range(9):
        a(f"buffer_load_dword v{4+i}, v1, s[8:11], s25 offen offset:{128*i}")
    srd(a, 12, 6, WS_BYTES)
    a(f"""
v_lshrrev_b32 v45, 2, v2
v_lshlrev_b32 v45, 7, v45
v_lshl_add_u32 v45, v3, 4, v45
v_and_b32 v46, 3, v0
v_lshl_add_u32 v45, v46, 2, v45
v_lshlrev_b32 v47, 4, v0
v_lshrrev_b32 v48, 3, v0
v_lshlrev_b32 v48, 8, v48
v_and_b32 v46, 7, v0
v_lshl_add_u32 v48, v46, 4, v48
v_cmp_gt_u32 vcc, 64, v0
v_mov_b32 v49, 0x7ff00000
s_nop 1
v_cndmask_b32 v49, v49, v48, vcc
s_mul_i32 s26, s21, 18432
s_lshl_b32 s27, s16, 7
s_add_u32 s26, s26, s27
s_mov_b32 s17, {f32hex(1.0/576)}
s_mov_b32 s18, {f32hex(1e-5)}
s_mov_b32 s20, 0
s_mov_b64 s[28:29], -1
s_waitcnt vmcnt(0)
""")
    X = 16
    for i in range(9):
        a(f"v_lshlrev_b32 v{X+2*i}, 16, v{4+i}\nv_and_b32 v{X+2*i+1}, 0xffff0000, v{4+i}")
    lab = a.uid("LN_loop")
    a.label(lab)
    a(f"v_add_f32 v40, v{X}, v{X+1}\nv_add_f32 v41, v{X+2}, v{X+3}")
    for i in range(4, 18, 2):
        a(f"v_add_f32 v40, v40, v{X+i}\nv_add_f32 v41, v41, v{X+i+1}")
    a("v_add_f32 v40, v40, v41")
    dpp_allreduce32(a, 40, 41)
    a("v_mul_f32 v40, s17, v40")
    a(f"v_sub_f32 v42, v{X}, v40\nv_sub_f32 v44, v{X+1}, v40\nv_mul_f32 v43, v42, v42\nv_mul_f32 v41, v44, v44")
    for i in range(2, 18, 2):
        a(f"v_sub_f32 v42, v{X+i}, v40\nv_sub_f32 v44, v{X+i+1}, v40\nv_fmac_f32 v43, v42, v42\nv_fmac_f32 v41, v44, v44")
    a("v_add_f32 v43, v43, v41")
    dpp_allreduce32(a, 43, 41)
    a("v_mul_f32 v43, s17, v43")
    a("v_cvt_pk_bf16_f32 v41, v40, v43\nv_lshlrev_b32 v40, 16, v41\nv_and_b32 v43, 0xffff0000, v41")
    a("v_add_f32 v43, s18, v43")
    rnd_bf16(a, 43, 43)
    a("v_sqrt_f32 v43, v43\ns_nop 0")
    rnd_bf16(a, 43, 43)
    a("v_rcp_f32 v43, v43\ns_nop 0")
    for i in range(9):
        a(f"""
v_sub_f32 v{X+2*i}, v{X+2*i}, v40
v_sub_f32 v{X+2*i+1}, v{X+2*i+1}, v40
v_cvt_pk_bf16_f32 v44, v{X+2*i}, v{X+2*i+1}
v_lshlrev_b32 v{X+2*i}, 16, v44
v_and_b32 v{X+2*i+1}, 0xffff0000, v44
v_mul_f32 v{X+2*i}, v{X+2*i}, v43
v_mul_f32 v{X+2*i+1}, v{X+2*i+1}, v43
v_cvt_pk_bf16_f32 v{4+i}, v{X+2*i}, v{X+2*i+1}
v_lshlrev_b32 v{X+2*i}, 16, v{4+i}
v_and_b32 v{X+2*i+1}, 0xffff0000, v{4+i}
v_cvt_pk_f16_f32 v44, v{X+2*i}, v{X+2*i+1}
v_cndmask_b32 v44, v{4+i}, v44, s[28:29]
ds_write_b32 v45, v44 offset:{1024*i}
""")
    a(f"""
v_add_u32 v45, 9216, v45
s_mov_b64 s[28:29], 0
s_add_u32 s20, s20, 1
s_cmp_lt_u32 s20, 2
s_cbranch_scc1 {lab}
s_waitcnt lgkmcnt(0)
s_barrier
""")
    for arr in range(2):
        for r in range(3):
            d = 4 + (arr*3 + r) * 4
            a(f"ds_read_b128 v[{d}:{d+3}], v47 offset:{arr*9216 + r*4096}")
    for arr, base in enumerate((WS_XN, WS_Y)):
        for r in range(3):
            d = 4 + (arr*3 + r) * 4
            a(f"s_add_u32 s27, s26, {base + r*8192}")
            a(f"s_waitcnt lgkmcnt({5 - arr*3 - r})")
            a(f"buffer_store_dwordx4 v[{d}:{d+3}], v{49 if r == 2 else 48}, s[12:15], s27 offen{flag}")
    a("s_endpgm")
```

```python
import sys; sys.path.insert(0, "gen")
from roles1 import *
import gemm, gemm6, pref2
from fft import *
from roles2 import *
from ri8 import role_ri8
from g2k import role_g2k
import f16
from roles16 import role_ln16, role_wt16
from cf2 import role_cf2
from rd2 import role_rd2
def epi_hook(a, g):
    a("s_lshl_b32 s46, s2, 2\ns_add_u32 s46, s46, s24")
    r = 0
    for kind, ref, nb in [("ka", KA_W2, D*F*2), ("lab", "tab_ti", f16.TI_BYTES), ("lab", "tab_cf", f16.CF_BYTES), ("ka", KA_B2, D*2)]:
        if kind == "ka":
            a(f"s_load_dwordx2 s[4:5], s[0:1], {ref}\ns_waitcnt lgkmcnt(0)")
            srd(a, 8, 4, nb)
        else:
            table_srd(a, 8, ref, nb, 4)
        per = -(-nb // (1024 * 1024))
        a(f"s_mul_i32 s47, s46, {per*1024}")
        for j in range(per):
            d = g.AFR + (r % g.RA) * 4; r += 1
            a(f"buffer_load_dwordx4 v[{d}:{d+3}], v{g.VA}, s[8:11], s47 offen\ns_add_u32 s47, s47, 1024")
def build(out, prio=None, stamps=False, hprio=None, w2k0=False):
    gemm.STAMPS = stamps
    g = gemm6.G(4, 4, 4, 4)
    a = Asm()
    a(f"""; v16
; @launch kernel=k0_kernel grid=(512,1,1) block=(256,1,1) lds=75776
; @launch kernel=k1_kernel grid=({512 if PRE else 456},1,1) block=(256,1,1) lds=75776
; @launch kernel=k2_kernel grid=(410,1,1) block=(256,1,1) lds=73728
; @launch kernel=k3_kernel grid=(256,1,1) block=(384,1,1) lds=36864""")
    a('.amdgcn_target "amdgcn-amd-amdhsa--gfx950"\n.text')
    kernel_header(a, "k0_kernel")
    a("s_cmp_ge_u32 s2, 256\ns_cbranch_scc1 K0_pf")
    role_ln16(a, 2)
    a.label("K0_pf")
    a("s_sub_u32 s3, s2, 256\ns_cmp_ge_u32 s3, 64\ns_cbranch_scc1 K0_code")
    role_wt16(a, 3)
    a.label("K0_code")
    a("s_cmp_ge_u32 s2, 328\ns_cbranch_scc1 K0_st\ns_cmp_lg_u32 s2, 320\ns_cbranch_scc1 K0_end")
    pref2.touch_code(a, "k1_kernel", 65536, 0, 1, 4, 2)
    a("s_endpgm")
    a.label("K0_st")
    a("s_sub_u32 s3, s2, 328\ns_cmp_ge_u32 s3, 184\ns_cbranch_scc1 K0_end")
    mall_stream(a, 3, 184, [("ka", KA_W1, D*F*2), ("lab", "tab_tf", f16.TF_BYTES), ("ka", KA_B1, F*2)] + ([("ka", KA_W2, D*F*2), ("lab", "tab_ti", f16.TI_BYTES), ("lab", "tab_cf", f16.CF_BYTES), ("ka", KA_B2, D*2)] if w2k0 else []))
    a.label("K0_end")
    a("s_endpgm")
    kernel_header(a, "k1_kernel")
    a("s_cmp_ge_u32 s2, 256\ns_cbranch_scc1 K1_b")
    gemm6.role_g1(a, 2, g, prio, None if w2k0 else epi_hook)
    a.label("K1_b")
    a("s_cmp_ge_u32 s2, 264\ns_cbranch_scc1 K1_rd")
    pref2.touch_code(a, "k1_kernel", 32768, 0, 1, 4, 2)
    a("s_endpgm")
    a.label("K1_rd")
    a("s_sub_u32 s3, s2, 264\ns_cmp_ge_u32 s3, 192\ns_cbranch_scc1 K1_pre")
    f16.role_rd16(a, 3, hprio)
    a.label("K1_pre")
    if PRE:
        a("s_sub_u32 s3, s2, 456\ns_cmp_ge_u32 s3, 56\ns_cbranch_scc1 K1_end")
        a(f"s_load_dwordx2 s[6:7], s[0:1], {KA_WS}\ns_waitcnt lgkmcnt(0)")
        srd(a, 12, 6, WS_P + 18874368)
        a(f"v_lshlrev_b32 v1, 4, v0\nv_mov_b32 v4, 0\nv_mov_b32 v5, 0\nv_mov_b32 v6, 0\nv_mov_b32 v7, 0\ns_mul_i32 s16, s3, {83*4096}\ns_add_u32 s16, s16, {WS_P}\ns_mov_b32 s17, 0")
        a.label("K1_prel")
        a("buffer_store_dwordx4 v[4:7], v1, s[12:15], s16 offen sc1\ns_add_u32 s16, s16, 4096\ns_add_u32 s17, s17, 1\ns_cmp_lt_u32 s17, 83\ns_cbranch_scc1 K1_prel")
    a.label("K1_end")
    a("s_endpgm")
    kernel_header(a, "k2_kernel")
    a("s_cmp_ge_u32 s2, 256\ns_cbranch_scc1 K2_b")
    role_g2k(a, 2, g, prio)
    a.label("K2_b")
    a("s_cmp_ge_u32 s2, 264\ns_cbranch_scc1 K2_cf")
    pref2.touch_code(a, "k2_kernel", 32768, 0, 1, 4, 2)
    a("s_endpgm")
    a.label("K2_cf")
    a("s_sub_u32 s3, s2, 264\ns_cmp_ge_u32 s3, 146\ns_cbranch_scc1 K2_end")
    f16.role_cf16(a, 3, hprio)
    a.label("K2_end")
    a("s_endpgm")
    kernel_header(a, "k3_kernel")
    a("s_cmp_ge_u32 s2, 256\ns_cbranch_scc1 K3_end")
    a("s_cmp_ge_u32 s2, 8\ns_cbranch_scc1 K3_a\nv_cmp_gt_u32 vcc, 320, v0\ns_cbranch_vccnz K3_a\nv_and_b32 v8, 63, v0\nv_lshlrev_b32 v8, 1, v8")
    pref2.touch_code(a, "k3_kernel", 8192, 8, 9, 4, 10)
    a("v_add_u32 v10, 64, v10\nglobal_load_dword v9, v10, s[4:5]")
    a.label("K3_a")
    f16.role_ri16(a, 2)
    a.label("K3_end")
    a("s_endpgm")
    a(".fill 16384, 4, 0xbf800000")
    a('.section .rodata,"a"\n.p2align 6')
    a(kernel_desc("k0_kernel", 64, 40))
    a(kernel_desc("k1_kernel", 256, 100))
    a(kernel_desc("k2_kernel", 256, 100))
    a(kernel_desc("k3_kernel", 256, 100))
    emit_bytes(a, "tab_cf", f16.cf_tables16())
    f16.emit_big_tables16(a)
    open(out, "w").write(a.text())
gemm6.PK = True
import os
PRE = bool(os.environ.get("PRE"))
build("v39.s", prio=2, w2k0=True)
build("v39_s.s", prio=2, w2k0=True, stamps=True)
```

```python
from asmlib import *
from roles1 import *
import gemm
from gemm import Cnt, stamp, stamp_flush
from gemm6 import G, SLAB, STG

BURST = 0
def role_g2k(a, swg, g, prio=None):
    stamp(a)
    MT, PD, LA, RA, NR = g.MT, g.PD, g.LA, g.RA, g.NRING
    L, T0, T1, T2 = g.VT, g.AFR, g.AFR + 1, g.AFR + 2
    a(f"""
s_load_dwordx2 s[4:5], s[0:1], {KA_W2}
s_load_dwordx2 s[6:7], s[0:1], {KA_WS}
v_lshrrev_b32 v{T0}, 6, v0
v_and_b32 v{L}, 63, v0
v_readfirstlane_b32 s24, v{T0}
s_and_b32 s25, s{swg}, 7             ; xcd
s_lshr_b32 s26, s{swg}, 3            ; j 0..31
s_lshr_b32 s46, s25, 1               ; kq
s_and_b32 s27, s25, 1
s_lshl_b32 s27, s27, 3
s_and_b32 s28, s26, 7
s_add_u32 s27, s27, s28              ; Mt2 (0..15)
s_lshr_b32 s28, s26, 3               ; Nt
s_and_b32 s47, s24, 1                ; i_m
s_lshr_b32 s48, s24, 1               ; j_k
""")
    if prio is not None: a(f"s_setprio {prio}")
    a("s_lshl_b32 s35, s24, 6")
    for j in range(5):
        a(f"v_add_u32 v{T0}, s35, v{L}")
        if j: a(f"v_add_u32 v{T0}, {256*j}, v{T0}")
        a(f"v_mul_u32_u24 v{T1}, 3641, v{T0}\nv_lshrrev_b32 v{T1}, 16, v{T1}")
        a(f"v_mul_u32_u24 v{T2}, 18, v{T1}\nv_sub_u32 v{T0}, v{T0}, v{T2}")
        a(f"v_lshrrev_b32 v{T2}, 5, v{T1}\nv_mul_u32_u24 v{T2}, {576-32}, v{T2}\nv_add_u32 v{T1}, v{T1}, v{T2}")
        a(f"v_mul_u32_u24 v{T1}, 1152, v{T1}")
        a(f"v_lshl_add_u32 v{g.VD+j}, v{T0}, 4, v{T1}")
    a(f"""
s_lshl_b32 s34, s24, 10
v_lshrrev_b32 v{T0}, 2, v{L}
v_mul_u32_u24 v{T0}, 288, v{T0}
v_and_b32 v{T1}, 3, v{L}
v_lshl_add_u32 v{g.VL}, v{T1}, 3, v{T0}
s_mul_i32 s29, s48, {SLAB}
v_add_u32 v{g.VL}, s29, v{g.VL}
v_add_u32 v{g.VL+1}, {2*STG}, v{g.VL}
s_lshl_b32 s30, s27, 2
s_lshl_b32 s29, s47, 1
s_add_u32 s30, s30, s29              ; rt0
s_mul_i32 s40, s30, 147456
s_lshl_b32 s29, s46, 1
s_add_u32 s29, s29, s48              ; ks
s_mul_i32 s29, s29, {18*1024}
s_add_u32 s40, s40, s29
s_add_u32 s40, s40, {WS_H}
""")
    for mt in range(1, MT): a(f"s_add_u32 s{40+mt}, s40, {((mt//2) + 64*(mt%2))*147456}")
    a(f"""
v_lshlrev_b32 v{g.VA}, 4, v{L}
v_lshlrev_b32 v{L+1}, 3, v{L}
s_mul_i32 s32, s28, 288
s_mul_i32 s29, s46, {1152*1152}
s_add_u32 s32, s32, s29
s_mov_b32 s45, {(1<<32)//18432 + 1}
s_waitcnt lgkmcnt(0)
""")
    srd(a, 8, 4, D*F*2)
    srd(a, 12, 6, WS_BYTES)
    NS = 18; NT = NS * 9
    vm = Cnt(a, "vmcnt", 63); lg = Cnt(a, "lgkmcnt", 15)
    dma_last = {}; dma_done = set(); act_last = {}; act_cnt = {}; tr_last = {}
    def w_off(s):
        if s < 16: return (144 * (s // 4) + 32 * (s % 4)) * 1152
        return (128 + 288 * (s - 16)) * 1152
    def dma_ops(s):
        out = []; slot = s % NR
        for j in (4, 0, 1, 2, 3):
            def f(j=j):
                if j == 4:
                    if s == 16:
                        for jj in range(5):
                            a(f"v_mul_hi_u32 v{L}, v{g.VD+jj}, s45\nv_and_b32 v{L}, 1, v{L}\nv_mul_u32_u24 v{L}, {128*1152}, v{L}\nv_add_u32 v{g.VD+jj}, v{g.VD+jj}, v{L}")
                    a(f"s_add_u32 s33, s32, {w_off(s)}")
                    lab = a.uid("dsk")
                    a(f"s_cmp_ge_u32 s24, 2\ns_cbranch_scc1 {lab}")
                a(f"s_add_u32 m0, s34, {slot*STG + j*4096}\ns_nop 0")
                a(f"buffer_load_dwordx4 v{g.VD+j}, s[8:11], s33 offen lds")
                if j == 4: a.label(lab)
                else: dma_last[s] = vm.issue()
                if j == 3: dma_done.add(s)
            out.append(f)
        return out
    def act_ops(s):
        out = []
        for mt in range(MT):
            def f(mt=mt):
                r = g.ACT + ((s % (PD + 1)) * MT + mt) * 4
                sa = 40 + mt
                if s < 16:
                    a(f"buffer_load_dwordx4 v[{r}:{r+3}], v{g.VA}, s[12:15], s{sa} offen offset:{(s % 4) * 1024}")
                    if s % 4 == 3: a(f"s_add_u32 s{sa}, s{sa}, 4608")
                    x = vm.issue()
                else:
                    jj = s - 16
                    for i in range(2):
                        a(f"s_sub_u32 s44, s{sa}, {4*4608 - ((2*jj+i)*4608 + 4096)}")
                        a(f"buffer_load_dwordx2 v[{r+2*i}:{r+2*i+1}], v{L+1}, s[12:15], s44 offen")
                        x = vm.issue()
                act_last[s] = x; act_cnt[s] = act_cnt.get(s, 0) + 1
            out.append(f)
        return out
    def tr_read(t):
        s, nt = divmod(t, 9)
        slot = s % NR
        r = g.AFR + (t % RA) * 4
        off = (slot % 2) * STG + nt * 32
        vl = g.VL + slot // 2
        a(f"ds_read_b64_tr_b16 v[{r}:{r+1}], v{vl} offset:{off}"); lg.issue()
        a(f"ds_read_b64_tr_b16 v[{r+2}:{r+3}], v{vl} offset:{off + 16*288}"); tr_last[t] = lg.issue()
    for f in dma_ops(0) + act_ops(0) + dma_ops(1) + act_ops(1): f()
    queue = dma_ops(2) + act_ops(2) + dma_ops(3) + act_ops(3)
    for s in range(4, PD + 1): queue += act_ops(s)
    next_act = PD + 1
    stamp(a)
    vm.wait(dma_last[0])
    a("s_barrier")
    stamp(a)
    next_read = 0; avail = 0
    def pump(upto):
        nonlocal next_read
        while next_read <= upto and next_read < NT and (next_read // 9) <= avail:
            tr_read(next_read); next_read += 1
    pump(LA - 1)
    for t in range(NT):
        s, nt = divmod(t, 9)
        if nt == 0:
            if s >= 1 and next_act < NS:
                queue += act_ops(next_act); next_act += 1
            while act_cnt.get(s, 0) < MT: queue.pop(0)()
            vm.wait(act_last[s])
        lg.wait(tr_last[t])
        ra = g.AFR + (t % RA) * 4
        for mt in range(MT):
            rb = g.ACT + ((s % (PD + 1)) * MT + mt) * 4
            d = g.acc(mt, nt)
            c = "0" if s == 0 else f"v[{d}:{d+3}]"
            a(f"v_mfma_f32_16x16x32_bf16 v[{d}:{d+3}], v[{ra}:{ra+3}], v[{rb}:{rb+3}], {c}")
            if mt == 1 and queue: queue.pop(0)()
            if mt == 3 and len(queue) > 3: queue.pop(0)()
        if nt == 9 - LA + 1 and s + 1 < NS:
            while (s + 1) not in dma_done: queue.pop(0)()
            n = vm.need(dma_last[s + 1])
            lg.done = lg.issued
            a("s_waitcnt lgkmcnt(0)" + (f" vmcnt({n})" if n is not None else ""))
            a("s_barrier")
            if s % 4 == 3: stamp(a)
            avail = s + 1
            pump(t + LA)
            if s + NR < NS:
                if BURST == 1:
                    for f in dma_ops(s + NR): f()
                elif BURST == 2: queue[0:0] = dma_ops(s + NR)
                else: queue += dma_ops(s + NR)
        pump(t + LA)
    assert not queue
    a("s_nop 7\ns_nop 3")
    stamp(a)
    if prio is not None: a("s_setprio 0")
    a(f"""
s_barrier
s_mul_i32 s29, s24, 18432
v_add_u32 v{T0}, s29, v{g.VA}
s_xor_b32 s29, s24, 2
s_mul_i32 s29, s29, 18432
v_add_u32 v{T1}, s29, v{g.VA}
s_add_u32 s37, s30, s48
s_mul_i32 s37, s37, 36
s_mul_i32 s38, s28, 9
s_add_u32 s37, s37, s38
s_lshl_b32 s37, s37, 2
s_add_u32 s37, s37, s46
s_lshl_b32 s37, s37, 10
s_add_u32 s37, s37, {WS_P}
s_cmp_eq_u32 s48, 1
s_cbranch_scc1 G2K_hi
""")
    def fin(keep):
        send = 1 - keep
        for x in range(2):
            for nt in range(9):
                r = g.acc(2*send + x, nt)
                a(f"ds_write_b128 v{T0}, v[{r}:{r+3}] offset:{(x*9+nt)*1024}")
        a("s_waitcnt lgkmcnt(0)\ns_barrier")
        for x in range(2):
            for nt in range(9):
                r = g.acc(2*send + x, nt)
                a(f"ds_read_b128 v[{r}:{r+3}], v{T1} offset:{(x*9+nt)*1024}")
        a("s_waitcnt lgkmcnt(0)")
        k = 0
        for nt in range(9):
            o = g.ACT + (k % 8) * 4; k += 1
            for x in range(2):
                r = g.acc(2*keep + x, nt); q = g.acc(2*send + x, nt)
                for v in range(4): a(f"v_add_f32 v{r+v}, v{r+v}, v{q+v}")
                a(f"v_cvt_pk_bf16_f32 v{o+2*x}, v{r}, v{r+1}\nv_cvt_pk_bf16_f32 v{o+2*x+1}, v{r+2}, v{r+3}")
            a(f"s_add_u32 s38, s37, {nt*4096}")
            a(f"buffer_store_dwordx4 v[{o}:{o+3}], v{g.VA}, s[12:15], s38 offen sc1")
    fin(0)
    a("s_branch G2K_done")
    a.label("G2K_hi")
    fin(1)
    a.label("G2K_done")
    stamp(a)
    stamp_flush(a, swg, 24, 0x8100000)
    a("s_endpgm")
M_ = (1<<32)//18432 + 1
for sub in range(3):
    for prow in range(32):
        for o in range(18):
            v = (prow + sub*576)*1152 + o*16
            assert (((v*M_) >> 32) & 1) == (1 if prow >= 16 else 0)
```

```python
import sys; sys.path.insert(0, "gen")
from roles1 import *
import gemm, gemm6, pref2
from fft import *
from roles2 import *
from ri8 import role_ri8
from g2k import role_g2k
import f16
from roles16 import role_ln16, role_wt16
from cf2 import role_cf2
from rd2 import role_rd2
def epi_hook(a, g):
    a("s_lshl_b32 s46, s2, 2\ns_add_u32 s46, s46, s24")
    r = 0
    for kind, ref, nb in [("ka", KA_W2, D*F*2), ("lab", "tab_ti", f16.TI_BYTES), ("lab", "tab_cf", f16.CF_BYTES), ("ka", KA_B2, D*2)]:
        if kind == "ka":
            a(f"s_load_dwordx2 s[4:5], s[0:1], {ref}\ns_waitcnt lgkmcnt(0)")
            srd(a, 8, 4, nb)
        else:
            table_srd(a, 8, ref, nb, 4)
        per = -(-nb // (1024 * 1024))
        a(f"s_mul_i32 s47, s46, {per*1024}")
        for j in range(per):
            d = g.AFR + (r % g.RA) * 4; r += 1
            a(f"buffer_load_dwordx4 v[{d}:{d+3}], v{g.VA}, s[8:11], s47 offen\ns_add_u32 s47, s47, 1024")
def build(out, prio=None, stamps=False, hprio=None, w2k0=False):
    gemm.STAMPS = stamps
    g = gemm6.G(4, 4, 4, 4)
    a = Asm()
    a(f"""; GFNet spectral filter * SiLU(MLP) fused pipeline: K0 LN/W-transpose/prefetch, K1 GEMM1+GELU || row-DFT, K2 GEMM2 || column FFT, K3 row-IDFT+combine
; @launch kernel=k0_kernel grid=(512,1,1) block=(256,1,1) lds=75776
; @launch kernel=k1_kernel grid=({512 if PRE else 456},1,1) block=(256,1,1) lds=75776
; @launch kernel=k2_kernel grid=(410,1,1) block=(256,1,1) lds=73728
; @launch kernel=k3_kernel grid=(256,1,1) block=(384,1,1) lds=36864""")
    a('.amdgcn_target "amdgcn-amd-amdhsa--gfx950"\n.text')
    kernel_header(a, "k0_kernel")
    a("s_cmp_ge_u32 s2, 256\ns_cbranch_scc1 K0_pf")
    role_ln16(a, 2)
    a.label("K0_pf")
    a("s_sub_u32 s3, s2, 256\ns_cmp_ge_u32 s3, 64\ns_cbranch_scc1 K0_code")
    role_wt16(a, 3)
    a.label("K0_code")
    a("s_cmp_ge_u32 s2, 328\ns_cbranch_scc1 K0_st\ns_cmp_lg_u32 s2, 320\ns_cbranch_scc1 K0_end")
    pref2.touch_code(a, "k1_kernel", 65536, 0, 1, 4, 2)
    a("s_endpgm")
    a.label("K0_st")
    a("s_sub_u32 s3, s2, 328\ns_cmp_ge_u32 s3, 184\ns_cbranch_scc1 K0_end")
    mall_stream(a, 3, 184, [("ka", KA_W1, D*F*2), ("lab", "tab_tf", f16.TF_BYTES), ("ka", KA_B1, F*2)] + ([("ka", KA_W2, D*F*2), ("lab", "tab_ti", f16.TI_BYTES), ("lab", "tab_cf", f16.CF_BYTES), ("ka", KA_B2, D*2)] if w2k0 else []))
    a.label("K0_end")
    a("s_endpgm")
    kernel_header(a, "k1_kernel")
    a("s_cmp_ge_u32 s2, 256\ns_cbranch_scc1 K1_b")
    gemm6.role_g1(a, 2, g, prio, None if w2k0 else epi_hook)
    a.label("K1_b")
    a("s_cmp_ge_u32 s2, 264\ns_cbranch_scc1 K1_rd")
    pref2.touch_code(a, "k1_kernel", 32768, 0, 1, 4, 2)
    a("s_endpgm")
    a.label("K1_rd")
    a("s_sub_u32 s3, s2, 264\ns_cmp_ge_u32 s3, 192\ns_cbranch_scc1 K1_pre")
    f16.role_rd16(a, 3, hprio)
    a.label("K1_pre")
    if PRE:
        a("s_sub_u32 s3, s2, 456\ns_cmp_ge_u32 s3, 56\ns_cbranch_scc1 K1_end")
        a(f"s_load_dwordx2 s[6:7], s[0:1], {KA_WS}\ns_waitcnt lgkmcnt(0)")
        srd(a, 12, 6, WS_P + 18874368)
        a(f"v_lshlrev_b32 v1, 4, v0\nv_mov_b32 v4, 0\nv_mov_b32 v5, 0\nv_mov_b32 v6, 0\nv_mov_b32 v7, 0\ns_mul_i32 s16, s3, {83*4096}\ns_add_u32 s16, s16, {WS_P}\ns_mov_b32 s17, 0")
        a.label("K1_prel")
        a("buffer_store_dwordx4 v[4:7], v1, s[12:15], s16 offen sc1\ns_add_u32 s16, s16, 4096\ns_add_u32 s17, s17, 1\ns_cmp_lt_u32 s17, 83\ns_cbranch_scc1 K1_prel")
    a.label("K1_end")
    a("s_endpgm")
    kernel_header(a, "k2_kernel")
    a("s_cmp_ge_u32 s2, 256\ns_cbranch_scc1 K2_b")
    role_g2k(a, 2, g, prio)
    a.label("K2_b")
    a("s_cmp_ge_u32 s2, 264\ns_cbranch_scc1 K2_cf")
    pref2.touch_code(a, "k2_kernel", 32768, 0, 1, 4, 2)
    a("s_endpgm")
    a.label("K2_cf")
    a("s_sub_u32 s3, s2, 264\ns_cmp_ge_u32 s3, 146\ns_cbranch_scc1 K2_end")
    f16.role_cf16(a, 3, hprio)
    a.label("K2_end")
    a("s_endpgm")
    kernel_header(a, "k3_kernel")
    a("s_cmp_ge_u32 s2, 256\ns_cbranch_scc1 K3_end")
    a("s_cmp_ge_u32 s2, 8\ns_cbranch_scc1 K3_a\nv_cmp_gt_u32 vcc, 320, v0\ns_nop 4\ns_cbranch_vccnz K3_a\nv_and_b32 v8, 63, v0\nv_lshlrev_b32 v8, 1, v8")
    pref2.touch_code(a, "k3_kernel", 8192, 8, 9, 4, 10)
    a("v_add_u32 v10, 64, v10\nglobal_load_dword v9, v10, s[4:5]")
    a.label("K3_a")
    f16.role_ri16(a, 2)
    a.label("K3_end")
    a("s_endpgm")
    a(".fill 16384, 4, 0xbf800000")
    a('.section .rodata,"a"\n.p2align 6')
    a(kernel_desc("k0_kernel", 64, 40))
    a(kernel_desc("k1_kernel", 256, 100))
    a(kernel_desc("k2_kernel", 256, 100))
    a(kernel_desc("k3_kernel", 256, 100))
    emit_bytes(a, "tab_cf", f16.cf_tables16())
    f16.emit_big_tables16(a)
    open(out, "w").write(a.text())
gemm6.PK = True
import os
PRE = bool(os.environ.get("PRE"))
build("v44.s", prio=2, w2k0=True)
```

```python
from asmlib import *
from roles1 import *
from roles2 import dpp_allreduce32, WT_LDS_HALF
from fft import slot_info, dord, dreg, table_srd, emit_bytes
import numpy as np
import gemm
from gemm import stamp, stamp_flush, Cnt

WS_WMAX = WS_BASE + 0x1810000
def h16(x): return np.asarray(x, dtype=np.float64).astype(np.float16).view(np.uint16)

def emit_big_tables16(a):
    c = np.cos(2 * np.pi * np.arange(576) / 576); c[np.abs(c) < 1e-15] = 0.0
    h = h16(c)
    for i in range(576): a(f".set c0_{i}, {h[i]}")
    for s in range(576):
        k, im = slot_info(s)
        a(f".set sk_{s}, {k}\n.set so_{s}, {144*im}")
    a(""".altmacro
.macro EH idx
.short c0_\\idx
.endm
.macro GETK slot
.set curk, sk_\\slot
.set curo, so_\\slot
.endm
.macro TFFRAG
 .set g_, 0
 .rept 4
  .set j_, 0
  .rept 16
   GETK %(16*st_+j_)
   .set n_, 32*s_+8*g_
   .rept 8
    EH %((n_*curk+curo)%576)
    .set n_, n_+1
   .endr
   .set j_, j_+1
  .endr
  .set g_, g_+1
 .endr
.endm
.macro TIFRAG
 .set g_, 0
 .rept 4
  .set i_, 0
  .rept 16
   .set sl_, par_*288+(4*s_+g_)*8
   .rept 8
    GETK %(sl_)
    EH %(((16*nt_+i_)*curk+curo)%576)
    .set sl_, sl_+1
   .endr
   .set i_, i_+1
  .endr
  .set g_, g_+1
 .endr
.endm
.p2align 8
tab_tf:
.set st_, 0
.rept 36
 .set s_, 0
 .rept 9
  TFFRAG
  .set s_, s_+1
 .endr
 .set st_, st_+1
.endr
.set sk_1, 0
.set so_1, 144
.p2align 8
tab_ti:
.set nt_, 0
.rept 18
 .set par_, 0
 .rept 2
  .set s_, 0
  .rept 9
   TIFRAG
   .set s_, s_+1
  .endr
  .set par_, par_+1
 .endr
 .set nt_, nt_+1
.endr
.noaltmacro
""")
TF_BYTES = 36*9*1024; TI_BYTES = 18*18*1024; CF_BYTES = 2*36864

def cf_tables16():
    def mat(theta_fn):
        C = np.zeros((2, 64, 8)); Sn = np.zeros((2, 64, 8))
        for q in range(2):
            for l in range(64):
                for t in range(8):
                    th = theta_fn(dord(q, l // 32, t), l % 32)
                    C[q, l, t] = np.cos(th); Sn[q, l, t] = np.sin(th)
        C[np.abs(C) < 1e-15] = 0; Sn[np.abs(Sn) < 1e-15] = 0
        return np.stack([h16(C), h16(Sn), h16(-Sn)]).tobytes()
    def tw(fn, scale):
        T = np.zeros((32, 64))
        for v in range(16):
            for l in range(64):
                th = fn(dreg(v, l // 32), l % 32)
                T[v, l] = np.cos(th) * scale; T[16 + v, l] = np.sin(th) * scale
        return np.ascontiguousarray(T.reshape(8, 4, 64).transpose(0, 2, 1)).astype(np.float32).tobytes()
    out = []
    for pi in range(2):
        out.append(mat(lambda k, o: 2 * np.pi * k * o / 32))
        out.append(mat(lambda a_, c_: 2 * np.pi * a_ * (2 * c_ + pi) / 64))
        out.append(mat(lambda c_, a_: 2 * np.pi * a_ * (2 * c_ + pi) / 64))
        out.append(tw(lambda b_, c_: 2 * np.pi * b_ * (2 * c_ + pi) / 2048, 1.0))
        out.append(tw(lambda c_, b_: 2 * np.pi * b_ * (2 * c_ + pi) / 2048, 0.125))
        out.append(b"\0" * 2048)
    return b"".join(out)

def wave_umax(a, v, t):
    for r in (8, 4, 2, 1):
        a(f"s_nop 1\nv_max_u32_dpp v{v}, v{v}, v{v} row_ror:{r} row_mask:0xf bank_mask:0xf")
    a(f"v_mov_b32 v{t}, v{v}\ns_nop 1\nv_permlane16_swap_b32 v{v}, v{t}\ns_nop 1\nv_max_u32 v{v}, v{v}, v{t}")
    a(f"v_mov_b32 v{t}, v{v}\ns_nop 1\nv_permlane32_swap_b32 v{v}, v{t}\ns_nop 1\nv_max_u32 v{v}, v{v}, v{t}")

def load_wexp(a, vl16, r4, sE):
    a(f"s_mov_b32 s{sE}, {WS_WMAX}\nbuffer_load_dwordx4 v[{r4}:{r4+3}], v{vl16}, s[12:15], s{sE} offen")
def reduce_wexp(a, r4, sE):
    a(f"v_max_u32 v{r4}, v{r4}, v{r4+1}\nv_max_u32 v{r4+2}, v{r4+2}, v{r4+3}\nv_max_u32 v{r4}, v{r4}, v{r4+2}")
    wave_umax(a, r4, r4 + 1)
    a(f"s_nop 0\nv_readfirstlane_b32 s{sE}, v{r4}\ns_nop 3\ns_lshr_b32 s{sE}, s{sE}, 7\ns_max_u32 s{sE}, s{sE}, 20\ns_min_u32 s{sE}, s{sE}, 240")

def role_rd16(a, swg, prio=None):
    stamp(a)
    a(f"""
s_load_dwordx2 s[6:7], s[0:1], {KA_WS}
v_lshrrev_b32 v1, 6, v0
v_and_b32 v2, 63, v0
v_readfirstlane_b32 s24, v1
s_and_b32 s25, s{swg}, 31
s_lshr_b32 s26, s{swg}, 5
s_mul_i32 s27, s26, 6
s_add_u32 s27, s27, s24
""")
    if prio is not None: a(f"s_setprio {prio}")
    table_srd(a, 8, "tab_tf", TF_BYTES, 4)
    a("s_waitcnt lgkmcnt(0)")
    srd(a, 12, 6, WS_BYTES)
    a(f"""
v_lshlrev_b32 v3, 4, v2
s_lshr_b32 s28, s24, 1
s_lshl_b32 s28, s28, 5
s_add_u32 s28, s28, s25
s_lshl_b32 s28, s28, 1
s_and_b32 s29, s24, 1
s_add_u32 s28, s28, s29
s_mul_i32 s28, s28, {18*1024}
s_add_u32 s28, s28, {WS_XN}
s_mul_i32 s29, s24, {18*1024}
s_mov_b32 s35, 0
""")
    for i in range(18):
        a(f"s_add_u32 m0, s29, {i*1024}\ns_add_u32 s31, s28, {i*1024}\nbuffer_load_dwordx4 v3, s[12:15], s31 offen lds")
    a(f"v_add_u32 v4, {36*1024}, v3")
    TB = 64
    a.label("RD_pass")
    a(f"s_mul_i32 s30, s27, {9*1024}")
    for i in range(9):
        if i % 4 == 0: a(f"s_add_u32 s31, s30, {i*1024}")
        a(f"buffer_load_dwordx4 v[{TB+4*i}:{TB+4*i+3}], v3, s[8:11], s31 offen offset:{(i%4)*1024}")
    a("s_cmp_lg_u32 s35, 0\ns_cbranch_scc1 RD_nobar\ns_waitcnt vmcnt(9)\ns_barrier")
    a.label("RD_nobar")
    AC, XF = 16, 140
    def xread(s9):
        for T in range(4):
            for eta in range(2):
                r = XF + (s9 % 2) * 32 + (T*2+eta) * 4
                off = (T * 18 + 9 * eta + s9) * 1024
                if off >= 36*1024: a(f"ds_read_b128 v[{r}:{r+3}], v4 offset:{off-36*1024}")
                else: a(f"ds_read_b128 v[{r}:{r+3}], v3 offset:{off}")
    xread(0)
    for s9 in range(9):
        if s9 + 1 < 9:
            xread(s9 + 1)
            a(f"s_waitcnt lgkmcnt(8) vmcnt({8 - s9})")
        else:
            a("s_waitcnt lgkmcnt(0) vmcnt(0)")
        for te in range(8):
            r = XF + (s9 % 2) * 32 + te * 4
            tb = TB + s9 * 4
            d = AC + te * 4
            c = "0" if s9 == 0 else f"v[{d}:{d+3}]"
            a(f"v_mfma_f32_16x16x32_f16 v[{d}:{d+3}], v[{r}:{r+3}], v[{tb}:{tb+3}], {c}")
    a("s_nop 7\ns_nop 3")
    a(f"s_cmp_lt_u32 s27, 18\ns_cselect_b32 s32, 1.0, -1.0")
    for T in range(4):
        for v in range(4):
            a(f"v_fma_f32 v{AC+T*8+v}, v{AC+T*8+4+v}, s32, v{AC+T*8+v}")
    for tau in range(2):
        for v in range(4):
            a(f"v_add_f32 v{48+tau*4+v}, v{AC+tau*8+v}, v{AC+(2+tau)*8+v}")
            a(f"v_sub_f32 v{56+tau*4+v}, v{AC+tau*8+v}, v{AC+(2+tau)*8+v}")
    for j in range(8): a(f"v_cvt_pk_f16_f32 v{208+j}, v{48+2*j}, v{49+2*j}")
    a(f"""
s_mul_i32 s33, s25, 36
s_add_u32 s33, s33, s27
s_lshl_b32 s33, s33, 11
s_add_u32 s33, s33, {WS_Z}
buffer_store_dwordx4 v[208:211], v3, s[12:15], s33 offen sc1
buffer_store_dwordx4 v[212:215], v3, s[12:15], s33 offen offset:1024 sc1
s_cmp_lg_u32 s35, 0
s_cbranch_scc1 RD_end
s_cmp_ge_u32 s24, 2
s_cbranch_scc1 RD_end
s_mov_b32 s35, 1
s_add_u32 s27, s27, 4
s_branch RD_pass
""")
    a.label("RD_end")
    stamp(a)
    stamp_flush(a, swg, 24, 0x8300000)
    a("s_endpgm")

D_, O_, TA_, TB_, TW_, W_, T_ = 16, 48, 80, 104, 128, 160, 176
LSTR = 528
L_TA, L_TB1, L_TB4, L_TW1, L_TW2, L_DATA, L_ST = 0, 6144, 12288, 18432, 26624, 36864, 53248
def stage16(a, tab, data_as_a, inverse):
    R, I = D_, D_ + 8
    C, Sx, N = tab, tab + 8, tab + 16
    P, Q = (N, Sx) if inverse else (Sx, N)
    first = [True, True]
    for (dr, tr_), (di, ti) in (((R, C), (I, C)), ((I, P), (R, Q))):
        for q in range(2):
            for o, (dd, tt) in enumerate(((dr, tr_), (di, ti))):
                d = O_ + 16 * o
                x = f"v[{dd+4*q}:{dd+4*q+3}]"; y = f"v[{tt+4*q}:{tt+4*q+3}]"
                if not data_as_a: x, y = y, x
                c = "0" if first[o] else f"v[{d}:{d+15}]"
                first[o] = False
                a(f"v_mfma_f32_32x32x16_f16 v[{d}:{d+15}], {x}, {y}, {c}")
    a("s_nop 15\ns_nop 3")
def tw_cvt(a, inverse):
    for v in range(0, 16, 2):
        for u in (v, v + 1):
            xr, xi, c, s = O_+u, O_+16+u, TW_+u, TW_+16+u
            t = T_ + 2 * (u % 2) + 4 * ((v // 2) % 2)
            n1, n2 = ("-", "") if inverse else ("", "-")
            a(f"v_mul_f32 v{t}, v{xr}, v{c}\nv_mul_f32 v{t+1}, v{xi}, v{c}\nv_fma_f32 v{t}, {n1}v{xi}, v{s}, v{t}\nv_fma_f32 v{t+1}, {n2}v{xr}, v{s}, v{t+1}")
        t = T_ + 4 * ((v // 2) % 2)
        a(f"v_cvt_pk_f16_f32 v{D_+v//2}, v{t}, v{t+2}\nv_cvt_pk_f16_f32 v{D_+8+v//2}, v{t+1}, v{t+3}")
    a("s_nop 1")

def role_cf16(a, swg, prio=None):
    stamp(a)
    a(f"""
s_load_dwordx2 s[6:7], s[0:1], {KA_WS}
v_lshrrev_b32 v1, 6, v0
v_and_b32 v2, 63, v0
v_readfirstlane_b32 s24, v1
s_and_b32 s25, s{swg}, 1             ; pi
s_lshr_b32 s26, s{swg}, 1
s_and_b32 s26, s26, 1                ; par
s_lshr_b32 s27, s{swg}, 2            ; cg
""")
    if prio is not None: a(f"s_setprio {prio}")
    table_srd(a, 8, "tab_cf", CF_BYTES, 4)
    a(f"""
v_lshlrev_b32 v3, 4, v2
v_lshlrev_b32 v4, 2, v2
s_lshl_b32 s28, s27, 2
s_add_u32 s28, s28, s24
s_lshl_b32 s29, s28, 1
s_add_u32 s29, s29, s26              ; k
s_mul_i32 s30, s26, 288
s_lshl_b32 s31, s28, 1
s_add_u32 s30, s30, s31
s_cmp_eq_u32 s27, 36
s_cselect_b32 s30, 1, s30
s_and_b32 s43, s30, 7
s_and_b32 s31, s30, 8
s_lshl_b32 s31, s31, 4
s_lshr_b32 s30, s30, 4
s_lshl_b32 s30, s30, 11              ; st*2048
s_add_u32 s30, s30, s31
s_lshl_b32 s31, s25, 10
s_add_u32 s30, s30, s31
s_add_u32 s30, s30, {WS_Z}
v_lshrrev_b32 v11, 3, v2
v_and_b32 v12, 7, v2
v_xor_b32 v12, v12, v11
v_mul_u32_u24 v11, {36*2048}, v11
v_lshl_add_u32 v11, v12, 4, v11
v_and_b32 v12, 7, v2
v_xor_b32 v13, s43, v12
v_lshlrev_b32 v13, 4, v13
v_lshl_add_u32 v13, v2, 7, v13
v_xor_b32 v14, 16, v13
s_cmp_eq_u32 s29, 0
s_cselect_b32 s33, 1, 0
s_cmp_eq_u32 s29, 288
s_cselect_b32 s33, 1, s33
s_mul_i32 s34, s25, 36864
s_mul_i32 s40, s24, 9216
s_add_u32 s34, s34, s40
s_waitcnt lgkmcnt(0)
""")
    srd(a, 12, 6, WS_BYTES)
    a(f"s_lshl_b32 s44, s24, 8\ns_add_u32 s44, s44, s30\ns_lshl_b32 s45, s24, 12")
    for i in range(4):
        a(f"s_add_u32 m0, s45, {L_DATA + i*1024}\ns_add_u32 s42, s44, {i*8*36*2048}\nbuffer_load_dwordx4 v11, s[12:15], s42 offen lds")
    for i in range(9):
        if i % 4 == 0: a(f"s_add_u32 m0, s40, {i*1024}\ns_add_u32 s42, s34, {i*1024}")
        a(f"buffer_load_dwordx4 v3, s[8:11], s42 offen offset:{(i%4)*1024} lds")
    load_wexp(a, 3, T_, 46)
    a(f"s_min_u32 s38, s29, 288\ns_lshl_b32 s38, s38, 13\ns_lshl_b32 s39, s25, 12\ns_add_u32 s38, s38, s39\ns_add_u32 s38, s38, {WS_WT}")
    for v in range(16):
        a(f"buffer_load_dword v{W_+v}, v4, s[12:15], s38 offen offset:{v*256}")
    stamp(a)
    a("s_waitcnt vmcnt(16)\ns_barrier")
    stamp(a)
    a("s_cmp_lg_u32 s27, 36\ns_cbranch_scc1 CF_go\ns_cmp_eq_u32 s24, 0\ns_cbranch_scc1 CF_go\ns_endpgm")
    a.label("CF_go")
    def rd_tab(reg, lds, n):
        for i in range(n): a(f"ds_read_b128 v[{reg+4*i}:{reg+4*i+3}], v3 offset:{lds+i*1024}")
    for part, va in ((0, 13), (1, 14)):
        for q in range(2):
            r = D_ + part*8 + q*4
            a(f"ds_read_b128 v[{r}:{r+3}], v{va} offset:{L_DATA + q*8192}")
    rd_tab(TB_, L_TB1, 6)
    reduce_wexp(a, T_, 46)
    a("s_sub_u32 s32, 247, s46\ns_sub_u32 s32, s32, s33\ns_lshl_b32 s32, s32, 23")
    a("s_waitcnt lgkmcnt(0)")
    a("s_cmp_eq_u32 s33, 0\ns_cbranch_scc1 CF_hasim")
    for j in range(8): a(f"v_mov_b32 v{D_+8+j}, 0")
    a("s_nop 1")
    a.label("CF_hasim")
    rd_tab(TW_, L_TW1, 8)
    rd_tab(TA_, L_TA, 6)
    stage16(a, TB_, True, False)
    stamp(a)
    a("s_waitcnt lgkmcnt(0)")
    rd_tab(TB_, L_TB4, 6)
    tw_cvt(a, False)
    rd_tab(TW_, L_TW2, 8)
    stamp(a)
    stage16(a, TA_, False, False)
    stamp(a)
    a("s_waitcnt vmcnt(0)")
    for v in range(0, 16, 2):
        for u in (v, v + 1):
            xr, xi, w = O_+u, O_+16+u, W_+u
            t = T_ + 4 * (u % 2)
            a(f"""v_lshlrev_b32 v{t}, 16, v{w}
v_and_b32 v{t+1}, 0xffff0000, v{w}
v_mul_f32 v{t}, s32, v{t}
v_mul_f32 v{t+1}, s32, v{t+1}
v_mul_f32 v{t+2}, v{xr}, v{t}
v_mul_f32 v{t+3}, v{xr}, v{t+1}
v_fma_f32 v{t+2}, -v{xi}, v{t+1}, v{t+2}
v_fma_f32 v{t+3}, v{xi}, v{t}, v{t+3}""")
        a(f"v_cvt_pk_f16_f32 v{D_+v//2}, v{T_+2}, v{T_+6}\nv_cvt_pk_f16_f32 v{D_+8+v//2}, v{T_+3}, v{T_+7}")
    a("s_nop 1")
    stage16(a, TA_, True, True)
    a("s_waitcnt lgkmcnt(0)")
    tw_cvt(a, True)
    stage16(a, TB_, False, True)
    stamp(a)
    a("s_cmp_lg_u32 s27, 36\ns_cbranch_scc1 CF_out")
    a(f"""
v_and_b32 v5, 31, v2
v_lshrrev_b32 v6, 5, v2
v_lshlrev_b32 v6, 9, v6
v_lshl_add_u32 v5, v5, 2, v6
s_lshl_b32 s38, s25, 12
s_add_u32 s38, s38, {WS_V288}
""")
    for v in range(16):
        a(f"v_mul_f32 v{O_+v}, 0x3e000000, v{O_+v}\nbuffer_store_dword v{O_+v}, v5, s[12:15], s38 offen offset:{(8*(v//4)+v%4)*128}")
    a("s_endpgm")
    a.label("CF_out")
    a(f"""
v_and_b32 v5, 31, v2
v_mul_u32_u24 v5, {LSTR}, v5
v_lshrrev_b32 v6, 5, v2
v_lshl_add_u32 v5, v6, 6, v5
s_lshl_b32 s38, s24, 2
s_add_u32 s38, s38, {L_ST}
v_add_u32 v5, s38, v5
""")
    for v in range(16):
        xr, xi = O_+v, O_+16+v
        t = T_ + (v % 4)
        off = (((v // 4) % 2) * 16 + 8 * (v // 8) + v % 4) * 16
        a(f"v_mul_f32 v{xr}, 0x3e000000, v{xr}\nv_mul_f32 v{xi}, 0x3e000000, v{xi}\nv_cvt_pk_f16_f32 v{t}, v{xr}, v{xi}\nds_write_b32 v5, v{t} offset:{off}")
    a(f"""
v_lshrrev_b32 v6, 5, v2
v_and_b32 v7, 31, v2
v_mul_u32_u24 v8, {LSTR}, v6
v_lshl_add_u32 v8, v7, 4, v8
s_mul_i32 s38, s24, {8*LSTR}
s_add_u32 s38, s38, {L_ST}
v_add_u32 v8, s38, v8
v_lshrrev_b32 v9, 4, v2
v_mul_u32_u24 v9, {9*1024}, v9
v_and_b32 v10, 15, v2
v_lshl_add_u32 v9, v10, 4, v9
s_lshl_b32 s38, s25, 1
s_add_u32 s38, s38, s26
s_lshl_b32 s38, s38, 6
s_lshl_b32 s39, s24, 4
s_add_u32 s38, s38, s39
s_mul_i32 s38, s38, {9*1024}
s_lshr_b32 s39, s27, 2
s_lshl_b32 s39, s39, 10
s_add_u32 s38, s38, s39
s_and_b32 s39, s27, 3
s_lshl_b32 s39, s39, 8
s_add_u32 s38, s38, s39
s_add_u32 s38, s38, {WS_V}
s_waitcnt lgkmcnt(0)
""")
    stamp(a)
    a("s_barrier")
    for j in range(4): a(f"ds_read_b128 v[{16+4*j}:{19+4*j}], v8 offset:{j*2*LSTR}")
    for j in range(4):
        a(f"s_waitcnt lgkmcnt({3-j})\nbuffer_store_dwordx4 v[{16+4*j}:{19+4*j}], v9, s[12:15], s38 offen sc1")
        if j < 3: a(f"s_add_u32 s38, s38, {4*9*1024}")
    stamp(a)
    stamp_flush(a, swg, 24, 0x8400000)
    a("s_endpgm")

def role_ri16(a, swg, nks=4):
    stamp(a)
    a(f"""
s_load_dwordx2 s[6:7], s[0:1], {KA_WS}
s_load_dwordx2 s[16:17], s[0:1], {KA_X}
s_load_dwordx2 s[18:19], s[0:1], {KA_OUT}
s_load_dwordx2 s[44:45], s[0:1], {KA_B2}
v_lshrrev_b32 v1, 6, v0
v_and_b32 v2, 63, v0
v_readfirstlane_b32 s24, v1
s_and_b32 s25, s{swg}, 63
s_lshr_b32 s26, s{swg}, 6
s_mul_i32 s27, s26, 5
s_cmp_eq_u32 s26, 3
s_cselect_b32 s47, 1, 0
s_sub_u32 s27, s27, s47
s_add_u32 s27, s27, s24              ; nt
s_cmp_lt_u32 s26, 2
s_cselect_b32 s47, 5, 4
v_lshlrev_b32 v3, 4, v2
s_mul_i32 s28, s25, {9*1024}
s_add_u32 s28, s28, {WS_V}
s_mul_i32 s30, s27, {18*1024}
s_mul_i32 s29, s24, 6
""")
    table_srd(a, 8, "tab_ti", TI_BYTES, 4)
    a("s_waitcnt lgkmcnt(0)")
    srd(a, 12, 6, WS_BYTES)
    for i in range(6):
        a(f"""s_add_u32 s38, s29, {i}
s_mul_i32 s32, s38, 57
s_lshr_b32 s32, s32, 9               ; blk = f/9
s_mul_i32 s33, s32, {64*9*1024 - 9*1024}
s_lshl_b32 s34, s38, 10
s_mov_b32 m0, s34
s_add_u32 s33, s33, s34
s_add_u32 s33, s33, s28
buffer_load_dwordx4 v3, s[12:15], s33 offen lds""")
    a("s_cmp_lt_u32 s24, s47\ns_cbranch_scc1 RI_active\ns_waitcnt vmcnt(0)\ns_barrier\ns_endpgm")
    a.label("RI_active")
    TB, PB = 64, 136
    for i in range(18):
        if i % 4 == 0: a(f"s_add_u32 s32, s30, {i*1024}")
        a(f"buffer_load_dwordx4 v[{TB+4*i}:{TB+4*i+3}], v3, s[8:11], s32 offen offset:{(i%4)*1024}")
    a(f"""
s_mul_i32 s31, s25, 36
s_add_u32 s31, s31, s27
s_lshl_b32 s31, s31, 12
s_add_u32 s31, s31, {WS_P}
s_add_u32 s43, s31, {18*4096}
""")
    for f in range(8):
        eta, ks = divmod(f, 4)
        a(f"buffer_load_dwordx4 v[{PB+4*f}:{PB+4*f+3}], v3, s[12:15], s{43 if eta else 31} offen offset:{ks*1024}")
    srd(a, 20, 16, S*D*2)
    srd(a, 48, 18, S*D*2)
    srd(a, 52, 44, D*2)
    XB, BB, WE = 168, 176, 180
    a(f"""
v_and_b32 v6, 15, v2
v_lshrrev_b32 v7, 3, v6
v_lshlrev_b32 v7, 4, v7
v_and_b32 v6, 7, v6
v_add_u32 v6, v6, v7
s_and_b32 s32, s25, 1
s_lshl_b32 s32, s32, 3
v_add_u32 v6, s32, v6
v_lshlrev_b32 v13, 7, v6
v_mul_u32_u24 v6, {32*1152}, v6
v_lshrrev_b32 v7, 4, v2
v_lshlrev_b32 v7, 3, v7
v_add_u32 v6, v6, v7
s_lshr_b32 s40, s25, 1
s_mul_i32 s40, s40, 1152
s_lshl_b32 s46, s27, 5
s_add_u32 s40, s40, s46
s_add_u32 s41, s40, {1024*1152}
""")
    for o in range(4):
        rho, eta = divmod(o, 2)
        a(f"buffer_load_dwordx2 v[{XB+2*o}:{XB+2*o+1}], v6, s[20:23], s{41 if rho else 40} offen offset:{576*eta}")
    for eta in range(2):
        a(f"buffer_load_dwordx2 v[{BB+2*eta}:{BB+2*eta+1}], v7, s[52:55], s46 offen offset:{576*eta}")
    a(f"s_lshr_b32 s43, s25, 1\ns_lshl_b32 s43, s43, 2\ns_add_u32 s43, s43, {WS_V288}\ns_add_u32 s34, s43, 4096")
    a("buffer_load_dword v14, v13, s[12:15], s43 offen\nbuffer_load_dword v15, v13, s[12:15], s34 offen")
    load_wexp(a, 3, WE, 36)
    NL = 8 + 9
    stamp(a)
    a(f"s_waitcnt vmcnt({18+NL})\ns_barrier")
    stamp(a)
    AC, BF = 16, 208
    steps = [(par, s) for par in range(2) for s in range(9)]
    def vread(idx):
        par, s = steps[idx]
        for pi in range(2):
            r = BF + (idx % 4) * 8 + pi * 4
            a(f"ds_read_b128 v[{r}:{r+3}], v3 offset:{((pi*2+par)*9 + s)*1024}")
    vread(0); vread(1); vread(2)
    for idx, (par, s) in enumerate(steps):
        if idx + 3 < 18: vread(idx + 3)
        lgn = 2 * min(3, 17 - idx)
        a(f"s_waitcnt lgkmcnt({lgn}) vmcnt({NL + 17 - idx})")
        th = TB + idx * 4
        for pi in range(2):
            r = BF + (idx % 4) * 8 + pi * 4
            d = AC + (pi*2+par) * 4
            c = "0" if s == 0 else f"v[{d}:{d+3}]"
            a(f"v_mfma_f32_16x16x32_f16 v[{d}:{d+3}], v[{th}:{th+3}], v[{r}:{r+3}], {c}")
    stamp(a)
    a(f"s_mov_b32 s35, {f32hex(-np.log2(np.e))}\ns_waitcnt vmcnt(0)")
    stamp(a)
    reduce_wexp(a, WE, 36)
    a(f"s_add_u32 s36, s36, 1\ns_lshl_b32 s36, s36, 23\ns_mov_b32 s37, {f32hex(8192.0/(S*D))}")
    started = set()
    for f in range(8):
        eta = f // 4
        for rho in range(2):
            o = rho * 2 + eta; d = 32 + 4*o; rr = PB + 4*f + 2*rho
            if o not in started:
                started.add(o)
                a(f"v_lshlrev_b32 v{d}, 16, v{rr}\nv_and_b32 v{d+1}, 0xffff0000, v{rr}\nv_lshlrev_b32 v{d+2}, 16, v{rr+1}\nv_and_b32 v{d+3}, 0xffff0000, v{rr+1}")
            else:
                t = 48 + 4 * rho
                a(f"v_lshlrev_b32 v{t}, 16, v{rr}\nv_and_b32 v{t+1}, 0xffff0000, v{rr}\nv_lshlrev_b32 v{t+2}, 16, v{rr+1}\nv_and_b32 v{t+3}, 0xffff0000, v{rr+1}")
                for v in range(4): a(f"v_add_f32 v{d+v}, v{d+v}, v{t+v}")
    T = 8
    def rnd4(b):
        a(f"v_cvt_pk_bf16_f32 v{T}, v{b}, v{b+1}\nv_cvt_pk_bf16_f32 v{T+1}, v{b+2}, v{b+3}")
        a(f"v_lshlrev_b32 v{b}, 16, v{T}\nv_and_b32 v{b+1}, 0xffff0000, v{T}\nv_lshlrev_b32 v{b+2}, 16, v{T+1}\nv_and_b32 v{b+3}, 0xffff0000, v{T+1}")
    def unp4(d, r):
        a(f"v_lshlrev_b32 v{d}, 16, v{r}\nv_and_b32 v{d+1}, 0xffff0000, v{r}\nv_lshlrev_b32 v{d+2}, 16, v{r+1}\nv_and_b32 v{d+3}, 0xffff0000, v{r+1}")
    for v in range(4):
        E0, O0, E1, O1 = AC+v, AC+4+v, AC+8+v, AC+12+v
        op = "v_add_f32" if v % 2 == 0 else "v_sub_f32"
        a(f"{op} v{E0}, v{E0}, v14\n{op} v{E1}, v{E1}, v15")
        a(f"""v_add_f32 v48, v{E0}, v{O0}
v_sub_f32 v49, v{E0}, v{O0}
v_add_f32 v50, v{E1}, v{O1}
v_sub_f32 v51, v{E1}, v{O1}
v_add_f32 v{64+v}, v48, v50
v_add_f32 v{68+v}, v49, v51
v_sub_f32 v{72+v}, v48, v50
v_sub_f32 v{76+v}, v49, v51""")
    for v in range(16): a(f"v_mul_f32 v{64+v}, s37, v{64+v}\nv_mul_f32 v{64+v}, s36, v{64+v}")
    stamp(a)
    for o in range(4):
        rho, eta = divmod(o, 2)
        G_ = 32 + 4*o; S_ = 64 + 4*o
        rnd4(G_)
        unp4(52, BB + 2*eta)
        for v in range(4): a(f"v_add_f32 v{G_+v}, v{G_+v}, v{52+v}")
        rnd4(G_)
        for v in range(4): a(f"v_mul_f32 v{52+v}, s35, v{G_+v}")
        for v in range(4): a(f"v_exp_f32 v{52+v}, v{52+v}")
        for v in range(4): a(f"v_add_f32 v{52+v}, 1.0, v{52+v}")
        for v in range(4): a(f"v_rcp_f32 v{52+v}, v{52+v}")
        for v in range(4): a(f"v_mul_f32 v{G_+v}, v{G_+v}, v{52+v}")
        rnd4(G_)
        rnd4(S_)
        for v in range(4): a(f"v_mul_f32 v{S_+v}, v{S_+v}, v{G_+v}")
        rnd4(S_)
        unp4(52, XB + 2*o)
        for v in range(4): a(f"v_add_f32 v{S_+v}, v{S_+v}, v{52+v}")
        a(f"v_cvt_pk_bf16_f32 v{56+2*o}, v{S_}, v{S_+1}\nv_cvt_pk_bf16_f32 v{57+2*o}, v{S_+2}, v{S_+3}")
        a(f"buffer_store_dwordx2 v[{56+2*o}:{57+2*o}], v6, s[48:51], s{41 if rho else 40} offen offset:{576*eta}")
    stamp(a)
    if gemm.STAMPS: a(f"s_lshl_b32 s{swg}, s{swg}, 1\ns_lshr_b32 s59, s24, 2\ns_add_u32 s{swg}, s{swg}, s59\ns_and_b32 s24, s24, 3")
    stamp_flush(a, swg, 24, 0x8200000)
    a("s_endpgm")
def role_ri16b(a, swg, nks=4):
    stamp(a)
    a(f"""
s_load_dwordx2 s[6:7], s[0:1], {KA_WS}
s_load_dwordx2 s[16:17], s[0:1], {KA_X}
s_load_dwordx2 s[18:19], s[0:1], {KA_OUT}
s_load_dwordx2 s[44:45], s[0:1], {KA_B2}
v_lshrrev_b32 v1, 6, v0
v_and_b32 v2, 63, v0
v_readfirstlane_b32 s24, v1
s_and_b32 s25, s{swg}, 63
s_lshr_b32 s26, s{swg}, 6
s_mul_i32 s27, s26, 5
s_cmp_eq_u32 s26, 3
s_cselect_b32 s47, 1, 0
s_sub_u32 s27, s27, s47
s_add_u32 s27, s27, s24              ; nt
s_cmp_lt_u32 s26, 2
s_cselect_b32 s47, 5, 4
v_lshlrev_b32 v3, 4, v2
s_mul_i32 s28, s25, {9*1024}
s_add_u32 s28, s28, {WS_V}
s_mul_i32 s30, s27, {18*1024}
s_mul_i32 s29, s24, 6
s_mul_i32 s31, s25, 36
s_add_u32 s31, s31, s27
s_lshl_b32 s31, s31, 12
s_add_u32 s31, s31, {WS_P}
s_add_u32 s43, s31, {18*4096}
v_lshrrev_b32 v7, 4, v2
v_lshlrev_b32 v7, 3, v7
s_lshl_b32 s46, s27, 5
""")
    table_srd(a, 8, "tab_ti", TI_BYTES, 4)
    a("s_waitcnt lgkmcnt(0)")
    srd(a, 12, 6, WS_BYTES)
    TB, PB = 64, 136
    XB, BB, WE = 168, 176, 180
    def vdma():
        for i in range(6):
            a(f"""s_add_u32 s38, s29, {i}
s_mul_i32 s32, s38, 57
s_lshr_b32 s32, s32, 9
s_mul_i32 s33, s32, {64*9*1024 - 9*1024}
s_lshl_b32 s34, s38, 10
s_mov_b32 m0, s34
s_add_u32 s33, s33, s34
s_add_u32 s33, s33, s28
buffer_load_dwordx4 v3, s[12:15], s33 offen lds""")
    a("s_cmp_lt_u32 s24, s47\ns_cbranch_scc1 RI_active")
    vdma()
    a("s_waitcnt vmcnt(0)\ns_barrier\ns_endpgm")
    a.label("RI_active")
    for f in range(8):
        eta, ks = divmod(f, 4)
        a(f"buffer_load_dwordx4 v[{PB+4*f}:{PB+4*f+3}], v3, s[12:15], s{43 if eta else 31} offen offset:{ks*1024}")
    srd(a, 52, 44, D*2)
    for eta in range(2):
        a(f"buffer_load_dwordx2 v[{BB+2*eta}:{BB+2*eta+1}], v7, s[52:55], s46 offen offset:{576*eta}")
    vdma()
    for i in range(18):
        if i % 4 == 0: a(f"s_add_u32 s32, s30, {i*1024}")
        a(f"buffer_load_dwordx4 v[{TB+4*i}:{TB+4*i+3}], v3, s[8:11], s32 offen offset:{(i%4)*1024}")
    srd(a, 20, 16, S*D*2)
    srd(a, 48, 18, S*D*2)
    a(f"""
v_and_b32 v6, 15, v2
v_lshrrev_b32 v5, 3, v6
v_lshlrev_b32 v5, 4, v5
v_and_b32 v6, 7, v6
v_add_u32 v6, v6, v5
s_and_b32 s32, s25, 1
s_lshl_b32 s32, s32, 3
v_add_u32 v6, s32, v6
v_lshlrev_b32 v13, 7, v6
v_mul_u32_u24 v6, {32*1152}, v6
v_add_u32 v6, v6, v7
s_lshr_b32 s40, s25, 1
s_mul_i32 s40, s40, 1152
s_add_u32 s40, s40, s46
s_add_u32 s41, s40, {1024*1152}
""")
    for o in range(4):
        rho, eta = divmod(o, 2)
        a(f"buffer_load_dwordx2 v[{XB+2*o}:{XB+2*o+1}], v6, s[20:23], s{41 if rho else 40} offen offset:{576*eta}")
    a(f"s_lshr_b32 s43, s25, 1\ns_lshl_b32 s43, s43, 2\ns_add_u32 s43, s43, {WS_V288}\ns_add_u32 s34, s43, 4096")
    a("buffer_load_dword v14, v13, s[12:15], s43 offen\nbuffer_load_dword v15, v13, s[12:15], s34 offen")
    load_wexp(a, 3, WE, 36)
    NL = 7
    T = 8
    def rnd4(b):
        a(f"v_cvt_pk_bf16_f32 v{T}, v{b}, v{b+1}\nv_cvt_pk_bf16_f32 v{T+1}, v{b+2}, v{b+3}")
        a(f"v_lshlrev_b32 v{b}, 16, v{T}\nv_and_b32 v{b+1}, 0xffff0000, v{T}\nv_lshlrev_b32 v{b+2}, 16, v{T+1}\nv_and_b32 v{b+3}, 0xffff0000, v{T+1}")
    def unp4(d, r):
        a(f"v_lshlrev_b32 v{d}, 16, v{r}\nv_and_b32 v{d+1}, 0xffff0000, v{r}\nv_lshlrev_b32 v{d+2}, 16, v{r+1}\nv_and_b32 v{d+3}, 0xffff0000, v{r+1}")
    a(f"s_mov_b32 s35, {f32hex(-np.log2(np.e))}\ns_waitcnt vmcnt({6+18+NL})")
    started = set()
    for f in range(8):
        eta = f // 4
        for rho in range(2):
            o = rho * 2 + eta; d = 32 + 4*o; rr = PB + 4*f + 2*rho
            if o not in started:
                started.add(o); unp4(d, rr)
            else:
                t = 48 + 4 * rho
                unp4(t, rr)
                for v in range(4): a(f"v_add_f32 v{d+v}, v{d+v}, v{t+v}")
    for o in range(4):
        rho, eta = divmod(o, 2)
        G_ = 32 + 4*o
        rnd4(G_)
        unp4(52, BB + 2*eta)
        for v in range(4): a(f"v_add_f32 v{G_+v}, v{G_+v}, v{52+v}")
        rnd4(G_)
        for v in range(4): a(f"v_mul_f32 v{52+v}, s35, v{G_+v}")
        for v in range(4): a(f"v_exp_f32 v{52+v}, v{52+v}")
        for v in range(4): a(f"v_add_f32 v{52+v}, 1.0, v{52+v}")
        for v in range(4): a(f"v_rcp_f32 v{52+v}, v{52+v}")
        for v in range(4): a(f"v_mul_f32 v{G_+v}, v{G_+v}, v{52+v}")
        rnd4(G_)
    a(f"s_waitcnt vmcnt({18+NL})\ns_barrier")
    AC, BF = 16, 208
    steps = [(par, s) for par in range(2) for s in range(9)]
    def vread(idx):
        par, s = steps[idx]
        for pi in range(2):
            r = BF + (idx % 4) * 8 + pi * 4
            a(f"ds_read_b128 v[{r}:{r+3}], v3 offset:{((pi*2+par)*9 + s)*1024}")
    vread(0); vread(1); vread(2)
    for idx, (par, s) in enumerate(steps):
        if idx + 3 < 18: vread(idx + 3)
        a(f"s_waitcnt lgkmcnt({2 * min(3, 17 - idx)}) vmcnt({NL + 17 - idx})")
        th = TB + idx * 4
        for pi in range(2):
            r = BF + (idx % 4) * 8 + pi * 4
            d = AC + (pi*2+par) * 4
            c = "0" if s == 0 else f"v[{d}:{d+3}]"
            a(f"v_mfma_f32_16x16x32_f16 v[{d}:{d+3}], v[{th}:{th+3}], v[{r}:{r+3}], {c}")
    a("s_waitcnt vmcnt(0)")
    reduce_wexp(a, WE, 36)
    a(f"s_add_u32 s36, s36, 1\ns_lshl_b32 s36, s36, 23\ns_mov_b32 s37, {f32hex(8192.0/(S*D))}")
    for v in range(4):
        E0, O0, E1, O1 = AC+v, AC+4+v, AC+8+v, AC+12+v
        op = "v_add_f32" if v % 2 == 0 else "v_sub_f32"
        a(f"{op} v{E0}, v{E0}, v14\n{op} v{E1}, v{E1}, v15")
        a(f"""v_add_f32 v48, v{E0}, v{O0}
v_sub_f32 v49, v{E0}, v{O0}
v_add_f32 v50, v{E1}, v{O1}
v_sub_f32 v51, v{E1}, v{O1}
v_add_f32 v{64+v}, v48, v50
v_add_f32 v{68+v}, v49, v51
v_sub_f32 v{72+v}, v48, v50
v_sub_f32 v{76+v}, v49, v51""")
    for v in range(16): a(f"v_mul_f32 v{64+v}, s37, v{64+v}\nv_mul_f32 v{64+v}, s36, v{64+v}")
    for o in range(4):
        rho, eta = divmod(o, 2)
        G_ = 32 + 4*o; S_ = 64 + 4*o
        rnd4(S_)
        for v in range(4): a(f"v_mul_f32 v{S_+v}, v{S_+v}, v{G_+v}")
        rnd4(S_)
        unp4(52, XB + 2*o)
        for v in range(4): a(f"v_add_f32 v{S_+v}, v{S_+v}, v{52+v}")
        a(f"v_cvt_pk_bf16_f32 v{56+2*o}, v{S_}, v{S_+1}\nv_cvt_pk_bf16_f32 v{57+2*o}, v{S_+2}, v{S_+3}")
        a(f"buffer_store_dwordx2 v[{56+2*o}:{57+2*o}], v6, s[48:51], s{41 if rho else 40} offen offset:{576*eta}")
    a("s_endpgm")
for f in range(36): assert (f*57)>>9 == f//9
```

```python
import sys; sys.path.insert(0, "gen")
from roles1 import *
import gemm, gemm6, pref2
from fft import *
from roles2 import *
from ri8 import role_ri8
from g2k import role_g2k
import f16
from roles16 import role_ln16, role_wt16
from cf2 import role_cf2
from rd2 import role_rd2
def epi_hook(a, g):
    a("s_lshl_b32 s46, s2, 2\ns_add_u32 s46, s46, s24")
    r = 0
    for kind, ref, nb in [("ka", KA_W2, D*F*2), ("lab", "tab_ti", f16.TI_BYTES), ("lab", "tab_cf", f16.CF_BYTES), ("ka", KA_B2, D*2)]:
        if kind == "ka":
            a(f"s_load_dwordx2 s[4:5], s[0:1], {ref}\ns_waitcnt lgkmcnt(0)")
            srd(a, 8, 4, nb)
        else:
            table_srd(a, 8, ref, nb, 4)
        per = -(-nb // (1024 * 1024))
        a(f"s_mul_i32 s47, s46, {per*1024}")
        for j in range(per):
            d = g.AFR + (r % g.RA) * 4; r += 1
            a(f"buffer_load_dwordx4 v[{d}:{d+3}], v{g.VA}, s[8:11], s47 offen\ns_add_u32 s47, s47, 1024")
def build(out, prio=None, stamps=False, hprio=None, w2k0=False):
    gemm.STAMPS = stamps
    g = gemm6.G(4, 4, 4, 4)
    a = Asm()
    a(f"""; GFNet spectral filter * SiLU(MLP) fused pipeline: K0 LN/W-transpose/prefetch, K1 GEMM1+GELU || row-DFT, K2 GEMM2 || column FFT, K3 row-IDFT+combine
; @launch kernel=k0_kernel grid=(512,1,1) block=(256,1,1) lds=75776
; @launch kernel=k1_kernel grid=({512 if PRE else 456},1,1) block=(256,1,1) lds=75776
; @launch kernel=k2_kernel grid=(410,1,1) block=(256,1,1) lds=73728
; @launch kernel=k3_kernel grid=(256,1,1) block=(384,1,1) lds=36864""")
    a('.amdgcn_target "amdgcn-amd-amdhsa--gfx950"\n.text')
    kernel_header(a, "k0_kernel")
    a("s_cmp_ge_u32 s2, 256\ns_cbranch_scc1 K0_pf")
    role_ln16(a, 2)
    a.label("K0_pf")
    a("s_sub_u32 s3, s2, 256\ns_cmp_ge_u32 s3, 64\ns_cbranch_scc1 K0_code")
    role_wt16(a, 3)
    a.label("K0_code")
    a("s_cmp_ge_u32 s2, 328\ns_cbranch_scc1 K0_st\ns_cmp_lg_u32 s2, 320\ns_cbranch_scc1 K0_end")
    pref2.touch_code(a, "k1_kernel", 65536, 0, 1, 4, 2)
    a("s_endpgm")
    a.label("K0_st")
    a("s_sub_u32 s3, s2, 328\ns_cmp_ge_u32 s3, 184\ns_cbranch_scc1 K0_end")
    mall_stream(a, 3, 184, [("ka", KA_W1, D*F*2), ("lab", "tab_tf", f16.TF_BYTES), ("ka", KA_B1, F*2)] + ([("ka", KA_W2, D*F*2), ("lab", "tab_ti", f16.TI_BYTES), ("lab", "tab_cf", f16.CF_BYTES), ("ka", KA_B2, D*2)] if w2k0 else []))
    a.label("K0_end")
    a("s_endpgm")
    kernel_header(a, "k1_kernel")
    a("s_cmp_ge_u32 s2, 256\ns_cbranch_scc1 K1_b")
    gemm6.role_g1(a, 2, g, prio, None if w2k0 else epi_hook)
    a.label("K1_b")
    a("s_cmp_ge_u32 s2, 264\ns_cbranch_scc1 K1_rd")
    pref2.touch_code(a, "k1_kernel", 32768, 0, 1, 4, 2)
    a("s_endpgm")
    a.label("K1_rd")
    a("s_sub_u32 s3, s2, 264\ns_cmp_ge_u32 s3, 192\ns_cbranch_scc1 K1_pre")
    f16.role_rd16(a, 3, hprio)
    a.label("K1_pre")
    if PRE:
        a("s_sub_u32 s3, s2, 456\ns_cmp_ge_u32 s3, 56\ns_cbranch_scc1 K1_end")
        a(f"s_load_dwordx2 s[6:7], s[0:1], {KA_WS}\ns_waitcnt lgkmcnt(0)")
        srd(a, 12, 6, WS_P + 18874368)
        a(f"v_lshlrev_b32 v1, 4, v0\nv_mov_b32 v4, 0\nv_mov_b32 v5, 0\nv_mov_b32 v6, 0\nv_mov_b32 v7, 0\ns_mul_i32 s16, s3, {83*4096}\ns_add_u32 s16, s16, {WS_P}\ns_mov_b32 s17, 0")
        a.label("K1_prel")
        a("buffer_store_dwordx4 v[4:7], v1, s[12:15], s16 offen sc1\ns_add_u32 s16, s16, 4096\ns_add_u32 s17, s17, 1\ns_cmp_lt_u32 s17, 83\ns_cbranch_scc1 K1_prel")
    a.label("K1_end")
    a("s_endpgm")
    kernel_header(a, "k2_kernel")
    a("s_cmp_ge_u32 s2, 256\ns_cbranch_scc1 K2_b")
    role_g2k(a, 2, g, prio)
    a.label("K2_b")
    a("s_cmp_ge_u32 s2, 264\ns_cbranch_scc1 K2_cf")
    pref2.touch_code(a, "k2_kernel", 32768, 0, 1, 4, 2)
    a("s_endpgm")
    a.label("K2_cf")
    a("s_sub_u32 s3, s2, 264\ns_cmp_ge_u32 s3, 146\ns_cbranch_scc1 K2_end")
    f16.role_cf16(a, 3, hprio)
    a.label("K2_end")
    a("s_endpgm")
    kernel_header(a, "k3_kernel")
    a("s_cmp_ge_u32 s2, 256\ns_cbranch_scc1 K3_end")
    a("s_cmp_ge_u32 s2, 8\ns_cbranch_scc1 K3_a\nv_cmp_gt_u32 vcc, 320, v0\ns_nop 4\ns_cbranch_vccnz K3_a\nv_and_b32 v8, 63, v0\nv_lshlrev_b32 v8, 1, v8")
    pref2.touch_code(a, "k3_kernel", 8192, 8, 9, 4, 10)
    a("v_add_u32 v10, 64, v10\nglobal_load_dword v9, v10, s[4:5]")
    a.label("K3_a")
    f16.role_ri16b(a, 2)
    a.label("K3_end")
    a("s_endpgm")
    a(".fill 16384, 4, 0xbf800000")
    a('.section .rodata,"a"\n.p2align 6')
    a(kernel_desc("k0_kernel", 64, 40))
    a(kernel_desc("k1_kernel", 256, 100))
    a(kernel_desc("k2_kernel", 256, 100))
    a(kernel_desc("k3_kernel", 256, 100))
    emit_bytes(a, "tab_cf", f16.cf_tables16())
    f16.emit_big_tables16(a)
    open(out, "w").write(a.text())
gemm6.PK = True
import os
PRE = bool(os.environ.get("PRE"))
build("v45.s", prio=2, w2k0=True)
```
